```python
import torch

def _softmax(x, axis=-1):
    return torch.softmax(x, dim=axis)
def _gelu(x):
    return torch.nn.functional.gelu(x, approximate="tanh")
def _silu(x):
    return torch.nn.functional.silu(x)
def _sigmoid(x):
    return torch.sigmoid(x)
def _layernorm(x, axis=-1, eps=1e-5):
    m = x.mean(dim=axis, keepdim=True)
    v = x.var(dim=axis, keepdim=True, unbiased=False)
    return (x - m) / torch.sqrt(v + eps)
def _scatter_add(tgt, idx, src, axis=0):
    return tgt.clone().index_add_(axis, idx, src)
def _segment_sum(src, seg, n):
    out = torch.zeros((n,) + src.shape[1:], dtype=src.dtype)
    return out.index_add_(0, seg, src)
def _pad(x, pw):
    flat = tuple(v for pair in reversed(pw) for v in pair)
    return torch.nn.functional.pad(x, flat)

kernel_name = 'parallel_sum__ssm_conv_s4__mixer_channel_mlp__prompt'

def setup_inputs():

    _w = (lambda a: (lambda t: t.to(torch.bfloat16) if t.is_floating_point() else t)(torch.as_tensor(a)))
    def _A_setup():
        B, L, D, N = 1, 2048, 640, 192
        A_re = -(lambda _x: torch.exp(torch.as_tensor(_x)))((lambda *s: torch.randn(*s, dtype=torch.bfloat16) * 3.2)(D, N))
        A_im = torch.pi * (lambda *s: torch.randn(*s, dtype=torch.bfloat16) * 0.05)(D, N)
        B_re = (lambda *s: torch.randn(*s, dtype=torch.bfloat16) * 0.1)(D, N)
        B_im = (lambda *s: torch.randn(*s, dtype=torch.bfloat16) * 0.1)(D, N)
        C_re = (lambda *s: torch.randn(*s, dtype=torch.bfloat16) * 0.1)(D, N)
        C_im = (lambda *s: torch.randn(*s, dtype=torch.bfloat16) * 0.1)(D, N)
        log_dt = (lambda *s: torch.randn(*s, dtype=torch.bfloat16) * 0.05)(D) * 0.5 - 4.0
        Dskip = (lambda *s: torch.randn(*s, dtype=torch.bfloat16) * 0.05)(D)
        return {
            "u": _w((lambda *s: torch.randn(*s, dtype=torch.bfloat16) * 0.05)(B, L, D)),
            "A_re": _w(A_re),
            "A_im": _w(A_im),
            "B_re": _w(B_re),
            "B_im": _w(B_im),
            "C_re": _w(C_re),
            "C_im": _w(C_im),
            "log_dt": _w(log_dt),
            "Dskip": _w(Dskip),
        }
    _A_in = _A_setup()

    def _B_setup():
        B, S, D, F = 1, 2048, 640, 1536
        return {
            "x": _w((lambda *s: torch.randn(*s, dtype=torch.bfloat16) * 0.05)(B, S, D)),
            "w1": _w((lambda *s: torch.randn(*s, dtype=torch.bfloat16) * 1.6)(D, F) * (D ** -0.5)),
            "b1": _w((lambda *s: torch.randn(*s, dtype=torch.bfloat16) * 0.8)(F)),
            "w2": _w((lambda *s: torch.randn(*s, dtype=torch.bfloat16) * 0.05)(F, D) * (F ** -0.5)),
            "b2": _w((lambda *s: torch.randn(*s, dtype=torch.bfloat16) * 0.05)(D)),
        }
    _B_in = _B_setup()

    return {
        "A_u": _A_in["u"],
        "A_A_re": _A_in["A_re"],
        "A_A_im": _A_in["A_im"],
        "A_B_re": _A_in["B_re"],
        "A_B_im": _A_in["B_im"],
        "A_C_re": _A_in["C_re"],
        "A_C_im": _A_in["C_im"],
        "A_log_dt": _A_in["log_dt"],
        "A_Dskip": _A_in["Dskip"],
        "B_x": _B_in["x"],
        "B_w1": _B_in["w1"],
        "B_b1": _B_in["b1"],
        "B_w2": _B_in["w2"],
        "B_b2": _B_in["b2"],
    }

def reference(A_u, A_A_re, A_A_im, A_B_re, A_B_im, A_C_re, A_C_im, A_log_dt, A_Dskip, B_x, B_w1, B_b1, B_w2, B_b2):
    def _A_ref(u, A_re, A_im, B_re, B_im, C_re, C_im, log_dt, Dskip):
        Bsz, L, D = u.shape
        dt = torch.exp(log_dt)[:, None]
        A = A_re + 1j * A_im
        Bc = B_re + 1j * B_im
        Cc = C_re + 1j * C_im
        logdA = dt * A
        dB = dt * Bc
        l = (lambda x, dt: x.to(dt))(torch.arange(L), A_re.dtype)
        P = torch.exp(logdA[:, :, None] * l[None, None, :])
        K = torch.einsum("dn,dnl,dn->dl", Cc, P, dB).real
        L2 = 2 * L
        Kp = _pad(K, ((0, 0), (0, L)))
        up = (lambda x, *d: x.permute(*d))(u, 0, 2, 1)
        up = _pad(up, ((0, 0), (0, 0), (0, L)))
        Kf = (lambda x, axes=(-2,-1): torch.fft.rfft2(x.float(), dim=axes))(Kp[:, None, :], axes=(-2, -1))
        Uf = (lambda x, axes=(-2,-1): torch.fft.rfft2(x.float(), dim=axes))(up[:, :, None, :], axes=(-2, -1))
        Yf = Uf * Kf[None, :, :, :]
        y = (lambda x, s, axes=(-2,-1): torch.fft.irfft2(x, s=s, dim=axes).to(torch.bfloat16))(Yf, (1, L2), axes=(-2, -1))[:, :, 0, :L]
        y = (lambda x, *d: x.permute(*d))(y, 0, 2, 1) + u * Dskip[None, None, :]
        return y

    def _B_ref(x, w1, b1, w2, b2):
        y = _layernorm(x, axis=-1)
        h = _gelu(torch.einsum("bsd,df->bsf", y, w1) + b1)
        return torch.einsum("bsf,fd->bsd", h, w2) + b2

    x = A_u
    xn = _layernorm(x, axis=-1)
    return x + _A_ref(xn, A_A_re, A_A_im, A_B_re, A_B_im, A_C_re, A_C_im, A_log_dt, A_Dskip) + _B_ref(xn, B_w1, B_b1, B_w2, B_b2)
```

```python
import re

TRANS = ("v_exp_f32", "v_log_f32", "v_rcp_f32", "v_rsq_f32", "v_sqrt_f32", "v_sin_f32", "v_cos_f32",
         "v_exp_f16", "v_rcp_f16", "v_rcp_iflag_f32")
RMW = ("v_fmac_f32", "v_dot2c_f32_bf16", "v_dot2c_f32_f16", "v_pk_fmac_f16", "v_writelane_b32")

def regs_of(op):
    op = op.strip()
    op = re.sub(r"^-", "", op)
    m = re.match(r"^abs\((.*)\)$", op) or re.match(r"^\|(.*)\|$", op)
    if m: op = m.group(1)
    m = re.match(r"^([vsa])(\d+)$", op)
    if m: return [(m.group(1), int(m.group(2)))]
    m = re.match(r"^([vsa])\[(\d+):(\d+)\]$", op)
    if m: return [(m.group(1), i) for i in range(int(m.group(2)), int(m.group(3)) + 1)]
    if op == "vcc": return [("s", "vcc_lo"), ("s", "vcc_hi")]
    if op in ("vcc_lo", "vcc_hi", "m0"): return [("s", op)]
    if op == "exec": return [("s", "exec_lo"), ("s", "exec_hi")]
    if op in ("exec_lo", "exec_hi"): return [("s", op)]
    return []

class Ins:
    __slots__ = ("text", "mn", "ops", "mods", "rd", "wr", "kind", "passes", "srcA", "srcB", "srcC", "dpp", "lds_dma",
                 "cnt", "target", "label", "wide_data", "states", "auto")
    def __init__(self, text, auto=False):
        self.text = text; self.auto = auto
        self.label = None; self.target = None; self.cnt = None; self.passes = 0
        self.rd = set(); self.wr = set(); self.srcA = self.srcB = self.srcC = set()
        self.dpp = False; self.lds_dma = False; self.wide_data = set(); self.states = 1
        t = text.split(";")[0].strip()
        if t.endswith(":"):
            self.label = t[:-1]; self.kind = "label"; self.mn = ""; self.states = 0; return
        if t.startswith(".") or not t:
            self.kind = "dir"; self.mn = ""; self.states = 0; return
        parts = t.split(None, 1)
        mn = parts[0]; rest = parts[1] if len(parts) > 1 else ""
        ops = []; depth = 0; cur = ""
        for ch in rest:
            if ch in "[(": depth += 1
            if ch in "])": depth -= 1
            if ch == "," and depth == 0:
                ops.append(cur.strip()); cur = ""
            else: cur += ch
        if cur.strip(): ops.append(cur.strip())
        mods = ""
        if ops:
            sp = ops[-1].split(None, 1)
            ops[-1] = sp[0]; mods = sp[1] if len(sp) > 1 else ""
        base = re.sub(r"_(e32|e64|dpp|sdwa)$", "", mn)
        self.mn = base; self.ops = ops; self.mods = mods
        R = lambda i: set(regs_of(ops[i])) if i < len(ops) else set()
        allr = lambda a: set().union(*[R(i) for i in range(a, len(ops))]) if len(ops) > a else set()
        if base.startswith("v_mfma"):
            self.kind = "mfma"
            self.passes = 8 if "32x32" in base else 4
            self.wr = R(0); self.srcA = R(1); self.srcB = R(2); self.srcC = R(3)
            self.rd = self.srcA | self.srcB | self.srcC
        elif base.startswith("v_"):
            self.kind = "valu"
            assert not (base.startswith("v_pk_") and "op_sel:[0,1" in mods), text
            self.dpp = mn.endswith("_dpp") or any(k in mods for k in ("row_shr", "row_shl", "row_ror", "wave_sh", "wave_ro", "quad_perm", "row_mirror", "row_half_mirror", "row_bcast", "row_newbcast"))
            if base.startswith("v_permlane") and "swap" in base:
                self.wr = R(0) | R(1); self.rd = R(0) | R(1)
            elif base in ("v_add_co_u32", "v_sub_co_u32", "v_addc_co_u32", "v_subb_co_u32", "v_div_scale_f32", "v_mad_u64_u32"):
                self.wr = R(0) | R(1); self.rd = allr(2)
            elif base == "v_nop":
                pass
            else:
                self.wr = R(0); self.rd = allr(1)
                if base in RMW or self.dpp: self.rd = self.rd | R(0)
        elif base.startswith("buffer_") or base.startswith("global_"):
            self.kind = "vmem"; self.cnt = "vm"
            modl = mods.split()
            if base in ("buffer_inv", "buffer_wbl2"):
                pass
            elif "lds" in modl or "load_lds" in base:
                self.lds_dma = True; self.rd = allr(0) | {("s", "m0")}
            elif "load" in base:
                self.wr = R(0); self.rd = allr(1)
            elif "atomic" in base:
                self.rd = allr(0)
                if "sc0" in modl:
                    self.wr = R(0)
                    if base.startswith("global_"): self.rd = allr(1)
            else:
                self.rd = allr(0)
                if "x4" in base or "x3" in base:
                    self.wide_data = R(0) if base.startswith("buffer_") else R(1)
        elif base.startswith("ds_"):
            self.kind = "ds"; self.cnt = "lgkm"
            if "read" in base or "permute" in base or "swizzle" in base or "rtn" in base:
                self.wr = R(0); self.rd = allr(1)
            else:
                self.rd = allr(0)
            if "addtid" in base: self.rd = self.rd | {("s", "m0")}; self.lds_dma = True
        elif base.startswith("s_load") or base.startswith("s_buffer_load") or base in ("s_memtime", "s_memrealtime"):
            self.kind = "smem"; self.cnt = "smem"; self.wr = R(0); self.rd = allr(1)
        elif base == "s_waitcnt":
            self.kind = "wait"
        elif base == "s_nop":
            self.kind = "nop"; self.states = int(ops[0], 0) + 1
        elif base.startswith("s_cbranch") or base == "s_branch":
            self.kind = "branch"; self.target = ops[0]
        elif base == "s_endpgm":
            self.kind = "end"
        elif base.startswith("s_"):
            self.kind = "salu"
            if base.startswith("s_cmp") or base.startswith("s_bitcmp") or base in ("s_barrier", "s_sleep", "s_setprio", "s_setreg_b32"):
                self.rd = allr(0)
            elif "saveexec" in base:
                self.wr = R(0) | set(regs_of("exec")); self.rd = allr(1) | set(regs_of("exec"))
            else:
                self.wr = R(0); self.rd = allr(1)
                if base in ("s_addk_i32", "s_mulk_i32", "s_cmov_b32", "s_cmov_b64", "s_bitset1_b32", "s_bitset0_b32"): self.rd = self.rd | R(0)
        else:
            raise ValueError("unknown instruction: " + text)

def parse_wait(ins):
    t = ins.text.split(";")[0]
    vm = re.search(r"vmcnt\((\d+)\)", t); lg = re.search(r"lgkmcnt\((\d+)\)", t)
    return (int(vm.group(1)) if vm else None, int(lg.group(1)) if lg else None)

def succs(prog, labels, i):
    ins = prog[i]
    if ins.kind == "end": return []
    if ins.kind == "branch":
        t = labels[ins.target]
        return [t] if ins.mn == "s_branch" else [t, i + 1]
    return [i + 1] if i + 1 < len(prog) else []

def insert_waits(prog, entries):
    while True:
        labels = {p.label: i for i, p in enumerate(prog) if p.label}
        st = {}
        work = []
        for e in entries:
            st[labels[e]] = ({}, {}, frozenset()); work.append(labels[e])
        need = {}
        def step(i, s):
            vm, lg, sm = dict(s[0]), dict(s[1]), set(s[2])
            ins = prog[i]
            touched = ins.rd | ins.wr
            nv = [vm[r] for r in touched if r in vm]
            nl = [lg[r] for r in touched if r in lg]
            if ins.cnt == "vm": nv = [vm[r] for r in ins.rd if r in vm]
            if ins.cnt == "lgkm" and not sm: nl = [lg[r] for r in ins.rd if r in lg]
            wv = min(nv) if nv else None
            wl = min(nl) if nl else None
            if wl is not None and sm: wl = 0
            if touched & sm: wl = 0
            if wv is not None: wv = min(wv, 63)
            if wl is not None: wl = min(wl, 15)
            req = (wv, wl) if (wv is not None or wl is not None) else None
            def apply(wv, wl):
                nonlocal vm, lg, sm
                if wv is not None: vm = {r: a for r, a in vm.items() if a < wv}
                if wl is not None:
                    if wl == 0: lg = {}; sm = set()
                    elif not sm: lg = {r: a for r, a in lg.items() if a < wl}
            if req: apply(*req)
            if ins.kind == "wait": apply(*parse_wait(ins))
            if ins.cnt == "vm":
                vm = {r: a + 1 for r, a in vm.items()}
                for r in ins.wr: vm[r] = 0
            elif ins.cnt == "lgkm":
                lg = {r: a + 1 for r, a in lg.items()}
                for r in ins.wr: lg[r] = 0
            elif ins.cnt == "smem":
                sm |= ins.wr
            return req, (vm, lg, frozenset(sm))
        def merge(a, b):
            vm = dict(a[0]); lg = dict(a[1])
            for r, x in b[0].items(): vm[r] = min(x, vm.get(r, x))
            for r, x in b[1].items(): lg[r] = min(x, lg.get(r, x))
            return (vm, lg, a[2] | b[2])
        while work:
            i = work.pop()
            req, out = step(i, st[i])
            for j in succs(prog, labels, i):
                n = out if j not in st else merge(st[j], out)
                if j not in st or n != st[j]:
                    st[j] = n; work.append(j)
        for i in st:
            req, _ = step(i, st[i])
            if req: need[i] = req
        if not need: return prog
        new = []
        for i, p in enumerate(prog):
            if i in need:
                wv, wl = need[i]
                t = "s_waitcnt" + (f" vmcnt({wv})" if wv is not None else "") + (f" lgkmcnt({wl})" if wl is not None else "")
                new.append(Ins(t, auto=True))
            new.append(p)
        prog = new

def isv(s): return {r for r in s if r[0] in "va"}
def iss(s): return {r for r in s if r[0] == "s"}

def required(p, c):
    n = 0
    if p.kind == "valu":
        vw = isv(p.wr); sw = iss(p.wr)
        if c.kind == "mfma" and vw & c.rd: n = max(n, 3 if p.mn.startswith("v_dot") else 2)
        if c.kind == "valu":
            if p.mn in TRANS and c.mn not in TRANS and vw & c.rd: n = max(n, 1)
            if p.mn.startswith("v_dot") and vw & (c.rd | c.wr):
                if not (c.mn == p.mn and not (vw & (set().union(*[set(regs_of(o)) for o in c.ops[1:3]])))): n = max(n, 3)
            if c.mn.startswith("v_permlane") and vw & c.rd: n = max(n, 2)
            if c.dpp and vw & c.rd: n = max(n, 2)
            if c.mn in ("v_readlane_b32", "v_readfirstlane_b32") and vw & c.rd: n = max(n, 1)
            if sw & c.rd: n = max(n, 4 if c.mn in ("v_readlane_b32", "v_writelane_b32") else 2)
        if c.kind in ("vmem", "ds") and p.mn.startswith("v_dot") and vw & c.rd: n = max(n, 3)
        if c.kind == "vmem" and sw & c.rd: n = max(n, 5)
    if p.kind == "mfma":
        big = p.passes == 8
        if c.kind == "mfma":
            if p.wr & (c.srcA | c.srcB): n = max(n, 12 if big else 8)
            if p.wr & c.srcC and not (p.wr == c.srcC and p.passes == c.passes): n = max(n, 10 if big else 6)
            if p.wr & c.wr and not (p.wr == c.wr and p.passes == c.passes): n = max(n, 10 if big else 6)
        elif c.kind in ("valu", "vmem", "ds"):
            if p.wr & (c.rd | c.wr): n = max(n, 12 if big else 8)
            if isv(p.srcC) & c.wr: n = max(n, 7 if big else 3)
    if p.kind == "salu" and ("s", "m0") in p.wr and c.lds_dma: n = max(n, 1)
    if p.kind == "vmem" and p.wide_data and p.wide_data & c.wr: n = max(n, 2 if c.kind in ("valu", "mfma") else 1)
    return n

def insert_nops(prog, entries):
    while True:
        labels = {p.label: i for i, p in enumerate(prog) if p.label}
        preds = {i: [] for i in range(len(prog))}
        for i in range(len(prog)):
            for j in succs(prog, labels, i): preds[j].append(i)
        fix = None
        for i, c in enumerate(prog):
            if c.kind in ("label", "dir", "nop", "wait", "branch", "end"): continue
            lack = 0
            stack = [(j, 0) for j in preds[i]]; seen = {}
            while stack:
                j, d = stack.pop()
                if d >= 12 or seen.get(j, 99) <= d: continue
                seen[j] = d
                r = required(prog[j], c)
                if r > d: lack = max(lack, r - d)
                for k in preds[j]: stack.append((k, d + prog[j].states))
            if lack:
                fix = (i, lack); break
        if not fix: return prog
        i, lack = fix
        prog = prog[:i] + [Ins(f"s_nop {lack-1}", auto=True)] + prog[i:]

class Asm:
    def __init__(self):
        self.lines = []
        self.uid = 0
    def __call__(self, s):
        for l in s.split("\n"):
            l = l.strip()
            if l and not l.startswith(";"): self.lines.append(l)
    def lab(self, name="L"):
        self.uid += 1
        return f"{name}_{self.uid}"
    def finish(self, entries, verbose=False):
        prog = [Ins(l) for l in self.lines]
        prog = insert_waits(prog, entries)
        prog = insert_nops(prog, entries)
        if verbose:
            nw = sum(1 for p in prog if p.auto and p.kind == "wait"); nn = sum(p.states for p in prog if p.auto and p.kind == "nop")
            print(f"auto waits {nw}, auto nop states {nn}, instrs {sum(1 for p in prog if p.states)}")
        out = []
        for p in prog:
            if p.kind in ("label", "dir"): out.append(p.text)
            else: out.append("    " + p.text + ("   ; auto" if p.auto else ""))
        return "\n".join(out)

def vr(a, n=1):
    return f"v{a}" if n == 1 else f"v[{a}:{a+n-1}]"
def sr(a, n=1):
    return f"s{a}" if n == 1 else f"s[{a}:{a+n-1}]"
```

```python
import sys, math, struct
from asmlib import Asm, vr, sr

NAME = "parallel_sum__ssm_conv_s4__mixer_channel_mlp__prompt"
T, D, F, NM = 2048, 640, 1536, 192
FL_PRE, FL_Y, FL_H = 0x0, 0x1000, 0x2000
XN, YT, W2F, HH, PROFO, WS_END = 0x10000, 0x290000, 0x510000, 0x700000, 0xD00000, 0xD40000
LDS_BYTES = 81920

def fbits(x): return struct.unpack("<I", struct.pack("<f", x))[0]
def hx(x): return f"0x{x & 0xffffffff:x}"

class Opt:
    wait = True
    prof = False
    spin = 200000
    rot1 = 5
    prio_g = 2
    prio_s = 0
    out_flags = ""
    par_flags = ""
    code_pf = True

def srd_tail(a, s, size):
    a(f"s_mov_b32 s{s+2}, {hx(size)}\ns_mov_b32 s{s+3}, 0x20000")

class VM:
    def __init__(self): self.l = []
    def add(self, tag, n=1): self.l += [tag]*n
    def cnt(self, *tags):
        last = max(i for i, t in enumerate(self.l) if t in tags)
        return len(self.l) - 1 - last

def stamp(a, o, idx, base=80):
    if o.prof: a(f"s_memrealtime s[{base+2*idx}:{base+2*idx+1}]")

def stamp_flush(a, o, n, wreg, vt, base=80):
    if not o.prof: return
    a("s_waitcnt lgkmcnt(0)")
    a(f"s_lshl_b32 s78, s2, 2\ns_add_u32 s78, s78, s{wreg}\ns_lshl_b32 s78, s78, 6\ns_add_u32 s78, s78, {hx(PROFO)}")
    for i in range(n):
        a(f"v_mov_b32 v{vt}, s{base+2*i}\nbuffer_store_dword v{vt}, off, s[12:15], s78 offset:{4*i}")

def poll(a, o, vdst, voff, srd, soff, expect, mask, first_issued=False, name="P"):
    if not o.wait: return
    L = a.lab(name); X = a.lab(name + "x"); C = a.lab(name + "c")
    a(f"s_mov_b64 exec, {mask}\ns_mov_b32 s76, 0")
    if first_issued: a(f"s_branch {C}")
    a(f"{L}:")
    a(f"buffer_load_dword v{vdst}, v{voff}, s[{srd}:{srd+3}], {soff} offen sc1")
    a("s_waitcnt vmcnt(0)")
    a(f"{C}:")
    a(f"v_cmp_ne_u32 vcc, {expect}, v{vdst}")
    a(f"s_add_u32 s76, s76, 1\ns_cmp_gt_u32 s76, {o.spin}\ns_cbranch_scc1 {X}")
    a(f"s_cbranch_vccnz {L}\n{X}:\ns_mov_b64 exec, -1")

def bf16_round(a, v):
    a(f"v_cvt_pk_bf16_f32 v{v}, v{v}, v{v}\nv_and_b32 v{v}, 0xffff0000, v{v}")

def code_prefetch(a, o, vt, vd, lab, nbytes):
    if not o.code_pf: return
    a(f"s_getpc_b64 s[74:75]")
    a(f"v_lshlrev_b32 v{vt}, 7, v0")
    a(f"v_min_u32 v{vt}, {hx(nbytes-4)}, v{vt}")
    a(f"global_load_dword v{vd}, v{vt}, s[74:75]")

def role_gemm(a, o):
    W = 3
    RB, CB, RBL, CBL = 32, 33, 34, 35
    KX, KW = 36, 37
    XS, WS_ = [61440, 69632], [i*12288 for i in range(5)]
    STAT = 77824
    a("role_g:")
    stamp(a, o, 0)
    a("""s_load_dwordx2 s[4:5], s[0:1], 0
    s_load_dwordx2 s[8:9], s[0:1], 80
    s_load_dwordx2 s[12:13], s[0:1], 128
    s_load_dwordx2 s[16:17], s[0:1], 112
    s_load_dwordx2 s[20:21], s[0:1], 88
    s_load_dwordx2 s[24:25], s[0:1], 104
    s_load_dwordx2 s[28:29], s[0:1], 120""")
    a(f"s_setprio {o.prio_g}")
    vm = VM()
    if o.code_pf:
        code_prefetch(a, o, 2, 3, "role_g", o.g_bytes); vm.add("pf")
    a(f"""v_lshrrev_b32 v1, 6, v0
    v_and_b32 v0, 63, v0
    v_readfirstlane_b32 s{W}, v1
    s_lshr_b32 s{RBL}, s2, 5
    s_bfe_u32 s{CBL}, s2, 0x20003
    s_bfe_u32 s{RB}, s2, 0x20001
    s_lshl3_add_u32 s{RB}, s{RB}, s{RBL}
    s_and_b32 s{CB}, s2, 1
    s_lshl2_add_u32 s{CB}, s{CB}, s{CBL}""")
    srd_tail(a, 4, T*D*2); srd_tail(a, 8, D*F*2); srd_tail(a, 12, WS_END); srd_tail(a, 16, T*D*2)
    srd_tail(a, 20, F*2); srd_tail(a, 24, D*2); srd_tail(a, 28, 256)
    ACC = 4
    CS = 52
    FR = [64, 92]
    B1R = 120
    SUM, SQ = 126, 127
    WREG = 128
    VXO = 228
    VWO = 230
    VXR = 233
    VWR = 241
    ONES = 244
    VL16, VL16B = 248, 249
    VG, VQ = 250, 251
    T0, T1, T2 = 252, 253, 254
    VPOLL = 255
    a(f"v_lshrrev_b32 v{VG}, 4, v0\nv_and_b32 v{VQ}, 15, v0")
    a(f"""s_lshl_b32 s40, s{RB}, 6
    s_lshl4_add_u32 s40, s{W}, s40
    s_mul_i32 s40, s40, 1280
    v_lshrrev_b32 v{T0}, 3, v0
    v_mul_u32_u24 v{T0}, 1280, v{T0}
    v_and_b32 v{T1}, 7, v0
    v_xor_b32 v{T1}, v{T1}, v{VG}
    v_lshl_add_u32 v{T2}, v{T1}, 4, v{T0}
    v_add_u32 v{VXO}, s40, v{T2}
    v_xor_b32 v{T1}, 4, v{T1}
    v_lshl_add_u32 v{T2}, v{T1}, 4, v{T0}
    s_add_u32 s40, s40, {8*1280}
    v_add_u32 v{VXO+1}, s40, v{T2}""")
    a(f"""s_mul_i32 s40, s{W}, {8*3072}
    s_mul_i32 s41, s{CB}, 384
    s_add_u32 s40, s40, s41
    s_and_b32 s41, s{W}, 1
    s_lshl_b32 s41, s41, 2""")
    for n in range(3):
        a(f"""v_add_u32 v{T0}, {64*n}, v0
        v_mul_u32_u24 v{T1}, 2731, v{T0}
        v_lshrrev_b32 v{T1}, 16, v{T1}
        v_mul_u32_u24 v{T2}, 24, v{T1}
        v_sub_u32 v{T0}, v{T0}, v{T2}
        v_and_b32 v{T2}, 2, v{T1}
        v_or_b32 v{T2}, s41, v{T2}
        v_xor_b32 v{T0}, v{T0}, v{T2}
        v_mul_u32_u24 v{T1}, 3072, v{T1}
        v_lshl_add_u32 v{T0}, v{T0}, 4, v{T1}
        v_add_u32 v{VWO+n}, s40, v{T0}""")
    a(f"""s_add_u32 s40, s{RBL}, s{CBL}
    s_and_b32 s40, s40, 1
    s_mul_i32 s40, s40, {o.rot1}
    s_lshl_b32 s{KX}, s40, 7
    s_mul_i32 s{KW}, s40, {2*98304}
    s_lshl_b32 s38, s{W}, 11
    s_mul_i32 s39, s{W}, 3072""")
    def dma_x(j):
        g = []
        for n in range(2):
            t = f"s_add_u32 m0, s38, {XS[j&1] + n*1024}\nbuffer_load_dwordx4 v{VXO+n}, s[4:7], s{KX} offen lds"
            if n == 1: t += f"\ns_add_u32 s{KX}, s{KX}, 128\ns_cmp_eq_u32 s{KX}, 1280\ns_cselect_b32 s{KX}, 0, s{KX}"
            g.append((t, f"x{j}"))
        return g
    def dma_w(s):
        g = []
        for n in range(3):
            t = f"s_add_u32 m0, s39, {WS_[s%5] + n*1024}\nbuffer_load_dwordx4 v{VWO+n}, s[8:11], s{KW} offen lds"
            if n == 2: t += f"\ns_add_u32 s{KW}, s{KW}, 98304\ns_cmp_eq_u32 s{KW}, {20*98304}\ns_cselect_b32 s{KW}, 0, s{KW}"
            g.append((t, f"w{s}"))
        return g
    for grp in (dma_x(0), dma_w(0), dma_w(1), dma_x(1), dma_w(2), dma_w(3)):
        for t, tag in grp: a(t); vm.add(tag)
    stamp(a, o, 1)
    a(f"""s_mul_i32 s40, s{CB}, 384
    s_mul_i32 s41, s{W}, 96
    s_add_u32 s40, s40, s41
    v_lshlrev_b32 v{T0}, 3, v{VG}""")
    for n in range(3):
        a(f"buffer_load_dwordx2 v[{B1R+2*n}:{B1R+2*n+1}], v{T0}, s[20:23], s40 offen offset:{32*n}"); vm.add("b1")
    a(f"""v_lshrrev_b32 v{T0}, 1, v{VQ}
    v_xor_b32 v{T0}, v{T0}, v{VG}
    v_lshlrev_b32 v{T0}, 4, v{T0}
    v_lshl_add_u32 v{T0}, v{VQ}, 7, v{T0}""")
    for i in range(4):
        a(f"s_xor_b32 s40, s{W}, {i}\ns_lshl_b32 s40, s40, 11\nv_add_u32 v{VXR+2*i}, s40, v{T0}\nv_xor_b32 v{VXR+2*i+1}, 64, v{VXR+2*i}")
    a(f"""v_lshrrev_b32 v{T0}, 2, v{VQ}
    v_lshl_add_u32 v{T1}, v{VG}, 3, v{T0}
    v_mul_u32_u24 v{T1}, 384, v{T1}
    v_and_b32 v{T2}, 3, v0
    v_lshl_add_u32 v{T1}, v{T2}, 3, v{T1}
    v_lshrrev_b32 v{T0}, 1, v{T0}
    v_and_b32 v{T2}, 1, v{VG}
    v_lshl_or_b32 v{T0}, v{T2}, 1, v{T0}
    s_mul_i32 s40, s{W}, 3""")
    for n in range(3):
        a(f"s_add_u32 s41, s40, {n}\nv_xor_b32 v{T2}, s41, v{T0}\nv_lshl_add_u32 v{VWR+n}, v{T2}, 5, v{T1}")
    a(f"s_mov_b32 s42, 0x3f803f80")
    for i in range(4): a(f"v_mov_b32 v{ONES+i}, s42")
    a(f"v_mov_b32 v{SUM}, 0\nv_mov_b32 v{SQ}, 0")
    a(f"v_lshlrev_b32 v{VL16}, 4, v0\nv_add_u32 v{VL16B}, 4096, v{VL16}")
    SH, SW = 48, 60
    a(f"""s_add_u32 s40, s{RBL}, s{CBL}
    s_and_b32 s40, s40, 3
    s_mul_i32 s40, s40, 3
    s_mul_i32 s41, s{W}, 6
    s_mul_i32 s43, s{RB}, {48*4096}
    s_add_u32 s43, s43, {hx(HH)}
    s_mul_i32 s44, s{CB}, {48*5120}
    s_add_u32 s44, s44, {hx(W2F)}""")
    for i in range(12):
        a(f"""s_cmp_ge_u32 s40, 6
        s_cselect_b32 s45, 18, 0
        s_add_u32 s45, s45, s40
        s_add_u32 s45, s45, s41
        s_lshl_b32 s46, s45, 12
        s_add_u32 s{SH+i}, s46, s43
        s_mul_i32 s46, s45, 5120
        s_add_u32 s{SW+i}, s46, s44
        s_add_u32 s40, s40, 1
        s_cmp_eq_u32 s40, 12
        s_cselect_b32 s40, 0, s40""")
    def w2_reg(i, slot):
        r = []
        for dt in range(5):
            d = WREG + slot*20 + dt*4
            if dt < 4: r.append(f"buffer_load_dwordx4 v[{d}:{d+3}], v{VL16}, s[12:15], s{SW+i} offen offset:{dt*1024} sc1")
            else: r.append(f"buffer_load_dwordx4 v[{d}:{d+3}], v{VL16B}, s[12:15], s{SW+i} offen sc1")
        return r
    a(f"s_mul_i32 s72, s{W}, 15360\ns_mul_i32 s73, s{W}, 5120\ns_add_u32 s73, s73, 61440")
    def w2_lds(i, slot):
        base = f"s72, {slot*5120}" if slot < 3 else "s73, 0"
        base4 = f"s72, {slot*5120+4096}" if slot < 3 else "s73, 4096"
        r = []
        for dt in range(5):
            if dt == 0: r.append(f"s_add_u32 m0, {base}\nbuffer_load_dwordx4 v{VL16}, s[12:15], s{SW+i} offen sc1 lds")
            elif dt < 4: r.append(f"buffer_load_dwordx4 v{VL16}, s[12:15], s{SW+i} offen offset:{dt*1024} sc1 lds")
            else: r.append(f"s_add_u32 m0, {base4}\nbuffer_load_dwordx4 v{VL16B}, s[12:15], s{SW+i} offen sc1 lds")
        return r
    pf_reg = [t for i in range(5) for t in w2_reg(i, i)]
    pf_lds = [t for i in range(4) for t in w2_lds(5+i, i)]
    def reads(s):
        fs = FR[s & 1]; r = []
        for n in range(3):
            for h in range(2):
                r.append(f"ds_read_b64_tr_b16 v[{fs+4*n+2*h}:{fs+4*n+2*h+1}], v{VWR+n} offset:{WS_[s%5] + h*1536}")
        for i in range(4):
            assert XS[(s>>1)&1] < 65536 or True
            r.append((i, s))
        return r
    for i in range(8): a(f"v_add_u32 v{VXR+i}, {XS[0]}, v{VXR+i}")
    def rd_text(x):
        if isinstance(x, str): return x
        i, s = x; fs = FR[s & 1]
        return f"ds_read_b128 v[{fs+12+4*i}:{fs+15+4*i}], v{VXR+2*i+(s&1)} offset:{XS[(s>>1)&1]-XS[0]}"
    def mfmas(s):
        fs = FR[s & 1]; r = []
        for n in range(3):
            for i in range(4):
                c = ACC + (n*4+i)*4
                src = "0" if s == 0 else f"v[{c}:{c+3}]"
                r.append(f"v_mfma_f32_16x16x32_bf16 v[{c}:{c+3}], v[{fs+4*n}:{fs+4*n+3}], v[{fs+12+4*i}:{fs+15+4*i}], {src}")
            c = CS + 4*n
            src = "0" if s == 0 else f"v[{c}:{c+3}]"
            r.append(f"v_mfma_f32_16x16x32_bf16 v[{c}:{c+3}], v[{fs+4*n}:{fs+4*n+3}], v[{ONES}:{ONES+3}], {src}")
        return r
    def dots(s):
        fs = FR[s & 1]; r = []
        for k in range(4):
            r.append(f"v_dot2c_f32_bf16 v{SUM}, s42, v{fs+12+k}\nv_dot2c_f32_bf16 v{SQ}, v{fs+12+k}, v{fs+12+k}")
        return r
    READY_AT, PRE_AT, PRE_CHK = 8, 12, 16
    a(f"v_lshlrev_b32 v{T2}, 8, v0\nv_mov_b32 v{T1}, 0")
    for s in range(21):
        fill = []
        if s < 20:
            n = vm.cnt(f"w{s}", f"x{s>>1}")
            a(f"s_waitcnt vmcnt({n}) lgkmcnt(0)\ns_barrier")
            if s == 0: stamp(a, o, 2)
            if o.wait and s == PRE_AT:
                poll(a, o, VPOLL, T1, 28, 0, 1, "1", first_issued=True, name="RDY")
                a(f"s_mov_b64 exec, 0xffff\nbuffer_load_dword v{VPOLL}, v{T2}, s[12:15], 0 offen sc1\ns_mov_b64 exec, -1"); vm.add("poll")
            if o.wait and s == PRE_CHK:
                poll(a, o, VPOLL, T2, 12, 0, 16, "0xffff", first_issued=True, name="PRE")
            dm = []
            if s % 2 == 0 and 2 <= s <= 16: dm += dma_x(s//2 + 1)
            if s + 4 < 20: dm += dma_w(s + 4)
            if o.wait and s == READY_AT:
                dm.append((f"buffer_load_dword v{VPOLL}, v{T1}, s[28:31], 0 offen sc1", "poll"))
            if s >= 17:
                for _ in range(3): dm.append((pf_reg.pop(0), "w2"))
            rd = [rd_text(x) for x in reads(s)]
            while dm or rd:
                if dm: fill.append(dm.pop(0))
                if rd: fill.append((rd.pop(0), None))
                if rd and not dm: fill.append((rd.pop(0), None))
        else:
            a("s_waitcnt lgkmcnt(0)\ns_barrier")
        if s >= 1:
            if s == 20:
                for t in dots(s-1): a(t)
            else:
                fill += [(t, None) for t in dots(s-1)]
            mf = mfmas(s-1)
        else: mf = []
        if s == 20:
            st = f"""v_mov_b32 v{T0}, v{SUM}
            v_mov_b32 v{T1}, v{SQ}
            v_permlane16_swap_b32 v{SUM}, v{T0}
            v_permlane16_swap_b32 v{SQ}, v{T1}
            v_add_f32 v{SUM}, v{SUM}, v{T0}
            v_add_f32 v{SQ}, v{SQ}, v{T1}
            v_mov_b32 v{T0}, v{SUM}
            v_mov_b32 v{T1}, v{SQ}
            v_permlane32_swap_b32 v{SUM}, v{T0}
            v_permlane32_swap_b32 v{SQ}, v{T1}
            v_add_f32 v{SUM}, v{SUM}, v{T0}
            v_add_f32 v{SQ}, v{SQ}, v{T1}
            v_mul_f32 v{SUM}, {hx(fbits(1/640))}, v{SUM}
            v_mul_f32 v{SQ}, {hx(fbits(1/640))}, v{SQ}
            v_fma_f32 v{SQ}, -v{SUM}, v{SUM}, v{SQ}
            v_max_f32 v{SQ}, 0, v{SQ}
            v_cvt_pk_bf16_f32 v{T0}, v{SQ}, v{SQ}
            v_and_b32 v{T0}, 0xffff0000, v{T0}
            v_add_f32 v{T0}, {hx(fbits(1e-5))}, v{T0}
            v_cvt_pk_bf16_f32 v{T0}, v{T0}, v{T0}
            v_and_b32 v{T0}, 0xffff0000, v{T0}
            v_sqrt_f32 v{T0}, v{T0}
            v_cvt_pk_bf16_f32 v{T0}, v{T0}, v{T0}
            v_and_b32 v{T0}, 0xffff0000, v{T0}
            v_rcp_f32 v{T0}, v{T0}
            v_mul_f32 v{SQ}, v{SQ}, v{T0}
            v_mul_f32 v{SQ}, v{SQ}, v{T0}
            v_cvt_pk_bf16_f32 v{SQ}, v{SQ}, v{SQ}
            v_and_b32 v{SQ}, 0xffff0000, v{SQ}
            v_add_f32 v{SQ}, {hx(fbits(1e-5))}, v{SQ}
            v_cvt_pk_bf16_f32 v{SQ}, v{SQ}, v{SQ}
            v_and_b32 v{SQ}, 0xffff0000, v{SQ}
            v_sqrt_f32 v{SQ}, v{SQ}
            v_cvt_pk_bf16_f32 v{SQ}, v{SQ}, v{SQ}
            v_and_b32 v{SQ}, 0xffff0000, v{SQ}
            v_rcp_f32 v{SQ}, v{SQ}
            v_mul_f32 v{SQ}, v{SQ}, v{T0}""".split("\n")
            fill = [("\n".join(st[i:i+3]), None) for i in range(0, len(st), 3)]
        k = 0
        per = max(1, -(-len(fill)//max(1, len(mf)))) if mf else len(fill)
        for m in mf:
            a(m)
            for _ in range(per):
                if k < len(fill):
                    t, tag = fill[k]; k += 1
                    a(t)
                    if tag: vm.add(tag)
        while k < len(fill):
            t, tag = fill[k]; k += 1
            a(t)
            if tag: vm.add(tag)
    stamp(a, o, 3)
    a(f"""s_lshl_b32 s40, s{W}, 7
    v_lshl_add_u32 v{T0}, v{VQ}, 3, s40
    v_add_u32 v{T0}, {STAT}, v{T0}
    ds_write_b64 v{T0}, v[{SUM}:{SQ}]""")
    ST = 64
    B1F = 72
    for n in range(3):
        for h in range(2):
            a(f"v_lshlrev_b32 v{B1F+4*n+2*h}, 16, v{B1R+2*n+h}\nv_and_b32 v{B1F+4*n+2*h+1}, 0xffff0000, v{B1R+2*n+h}")
    a("s_waitcnt lgkmcnt(0)\ns_barrier")
    for i in range(4):
        a(f"v_xor_b32 v{T1}, {i<<7}, v{T0}\nds_read_b64 v[{ST+2*i}:{ST+2*i+1}], v{T1}")
    VH = 84
    a(f"""v_and_b32 v{T0}, 1, v{VG}
    v_xor_b32 v{T0}, s{W}, v{T0}
    v_lshrrev_b32 v{T1}, 1, v{VG}
    v_lshlrev_b32 v{T1}, 8, v{T1}
    v_lshl_add_u32 v{T1}, v{VQ}, 4, v{T1}
    v_lshl_add_u32 v{VH}, v{T0}, 10, v{T1}
    v_xor_b32 v{VH+1}, 0x800, v{VH}
    s_mul_i32 s40, s{CB}, 12
    s_mul_i32 s41, s{W}, 3
    s_add_u32 s40, s40, s41""")
    for n in range(3):
        a(f"s_add_u32 s41, s40, {n}\ns_lshr_b32 s44, s41, 1\ns_lshl_b32 s44, s44, 12\ns_and_b32 s41, s41, 1\ns_lshl_b32 s41, s41, 9\ns_add_u32 s44, s44, s41\ns_add_u32 s{45+n}, s44, s43")
    c1 = -2*math.sqrt(2/math.pi)*math.log2(math.e); c2 = c1*0.044715
    a(f"s_mov_b32 s40, {hx(fbits(c2))}\ns_mov_b32 s41, {hx(fbits(c1))}")
    a("s_waitcnt lgkmcnt(0)\ns_barrier")
    pf = pf_reg + pf_lds
    TP = 88
    OUT = [96, 100]
    npair = 0
    for n in range(3):
        for q in range(2):
            ob = OUT[(n*2+q) & 1]
            for il in range(2):
                i = 2*q + il
                c = ACC + (n*4+i)*4
                S = f"v[{ST+2*i}:{ST+2*i+1}]"
                P = [f"v[{TP+4*h}:{TP+4*h+1}]" for h in range(2)]
                Q = [f"v[{TP+4*h+2}:{TP+4*h+3}]" for h in range(2)]
                for h in range(2): a(f"v_pk_fma_f32 {P[h]}, v[{CS+4*n+2*h}:{CS+4*n+2*h+1}], {S}, v[{c+2*h}:{c+2*h+1}] op_sel_hi:[1,0,1] neg_lo:[0,1,0] neg_hi:[0,1,0]")
                for h in range(2): a(f"v_pk_fma_f32 {P[h]}, {S}, {P[h]}, v[{B1F+4*n+2*h}:{B1F+4*n+2*h+1}] op_sel:[1,0,0] op_sel_hi:[1,1,1]")
                for h in range(2): a(f"v_pk_mul_f32 {Q[h]}, {P[h]}, {P[h]}")
                for h in range(2): a(f"v_pk_fma_f32 {Q[h]}, {Q[h]}, s[40:41], s[40:41] op_sel:[0,0,1] op_sel_hi:[1,0,1]")
                if pf: a(pf.pop(0)); vm.add("w2")
                for h in range(2): a(f"v_pk_mul_f32 {Q[h]}, {Q[h]}, {P[h]}")
                for h in range(2):
                    for e in range(2): a(f"v_exp_f32_e64 v{TP+4*h+2+e}, v{TP+4*h+2+e}")
                for h in range(2): a(f"v_pk_add_f32 {Q[h]}, {Q[h]}, 1.0 op_sel_hi:[1,0]")
                for h in range(2):
                    for e in range(2): a(f"v_rcp_f32_e64 v{TP+4*h+2+e}, v{TP+4*h+2+e}")
                if pf and (npair & 1): a(pf.pop(0)); vm.add("w2")
                npair += 1
                for h in range(2): a(f"v_pk_mul_f32 {P[h]}, {P[h]}, {Q[h]}")
                for h in range(2): a(f"v_cvt_pk_bf16_f32 v{ob+2*il+h}, v{TP+4*h}, v{TP+4*h+1}")
            a(f"v_permlane16_swap_b32 v{ob}, v{ob+2}\nv_permlane16_swap_b32 v{ob+1}, v{ob+3}")
            a(f"buffer_store_dwordx4 v[{ob}:{ob+3}], v{VH+q}, s[12:15], s{45+n} offen sc1"); vm.add("h")
    stamp(a, o, 4)
    A2 = 0 + 4
    HB = [84, 100, 228]
    B2R = 116
    VHO = 244
    a(f"s_mul_i32 s40, s{CB}, 160\nv_lshlrev_b32 v{T0}, 3, v{VG}")
    for dt in range(5):
        a(f"buffer_load_dwordx2 v[{B2R+2*dt}:{B2R+2*dt+1}], v{T0}, s[24:27], s40 offen offset:{32*dt}"); vm.add("b2")
    n1 = min(len(pf), 10)
    for _ in range(n1): a(pf.pop(0)); vm.add("w2")
    for i in range(4):
        a(f"s_xor_b32 s40, s{W}, {i}\ns_lshl_b32 s40, s40, 10\nv_add_u32 v{VHO+i}, s40, v{VL16}")
    a(f"s_waitcnt vmcnt({vm.cnt('h')})\ns_barrier")
    stamp(a, o, 5)
    a(f"""s_lshl_b32 s44, s{RB}, 8
    s_add_u32 s44, s44, {hx(FL_H)}""")
    if o.wait:
        SK = a.lab("hs")
        a(f"""s_cmp_lg_u32 s{W}, 0
        s_cbranch_scc1 {SK}
        s_lshl2_add_u32 s45, s{CB}, s44
        v_mov_b32 v{T0}, 1
        s_mov_b64 exec, 1
        buffer_store_dword v{T0}, off, s[12:15], s45 sc1
        s_mov_b64 exec, -1
        {SK}:""")
    while pf: a(pf.pop(0)); vm.add("w2")
    for dt in range(5):
        for h in range(2):
            a(f"v_lshlrev_b32 v{A2+4*dt+2*h}, 16, v{B2R+2*dt+h}\nv_and_b32 v{A2+4*dt+2*h+1}, 0xffff0000, v{B2R+2*dt+h}")
    a(f"v_lshlrev_b32 v{T1}, 4, v0\ns_lshl2_add_u32 s44, s{W}, s44")
    poll(a, o, VPOLL, T1, 12, "s44", 1, "3", name="HF")
    a("s_waitcnt vmcnt(0)")
    stamp(a, o, 6)
    def h_ld(i):
        b = HB[i % 3]
        return [f"buffer_load_dwordx4 v[{b+4*t}:{b+4*t+3}], v{VHO+t}, s[12:15], s{SH+i} offen sc1" for t in range(4)]
    for i in range(3):
        for t in h_ld(i): a(t)
    slot_of = {0:0, 1:1, 2:2, 3:3, 4:4, 5:3, 6:4, 7:3, 8:4, 9:0, 10:1, 11:2}
    VLR, VL3 = 116, 117
    a(f"v_add_u32 v{VLR}, s72, v{VL16}\nv_add_u32 v{VL3}, s73, v{VL16}")
    VOX = 118
    VTR, VYD, VYR, VTW = 121, 124, 125, 126
    a(f"""s_lshl_b32 s40, s{RB}, 6
    s_lshl4_add_u32 s40, s{W}, s40
    s_mul_i32 s40, s40, 1280
    s_mul_i32 s41, s{CB}, 160
    s_add_u32 s40, s40, s41""")
    for q in range(3):
        a(f"""v_add_u32 v{T0}, {64*q}, v0
        v_mul_u32_u24 v{T1}, 6554, v{T0}
        v_lshrrev_b32 v{T1}, 16, v{T1}
        v_mul_u32_u24 v{T2}, 10, v{T1}
        v_sub_u32 v{T0}, v{T0}, v{T2}
        v_mul_u32_u24 v{T2}, 1280, v{T1}
        v_lshl_add_u32 v{T2}, v{T0}, 4, v{T2}
        v_add_u32 v{VOX+q}, s40, v{T2}
        v_mul_u32_u24 v{T2}, 336, v{T1}
        v_lshl_add_u32 v{T2}, v{T0}, 5, v{T2}
        v_add_u32 v{VTR+q}, s72, v{T2}""")
    a(f"""v_cmp_gt_u32 vcc, 32, v0
    v_mov_b32 v{T0}, 0x7ff00000
    v_cndmask_b32 v{VOX+2}, v{T0}, v{VOX+2}, vcc
    v_mul_u32_u24 v{T0}, 336, v{VQ}
    v_lshl_add_u32 v{T0}, v{VG}, 4, v{T0}
    v_add_u32 v{VTW}, s72, v{T0}""")
    a(f"""v_sub_u32 v{T0}, v{VQ}, v{VG}
    v_and_b32 v{T0}, 7, v{T0}
    v_lshlrev_b32 v{T0}, 4, v{T0}
    v_lshl_add_u32 v{VYD}, v{VG}, 12, v{T0}
    s_mul_i32 s40, s{CB}, 80
    s_mul_i32 s41, s{W}, 20
    s_add_u32 s40, s40, s41
    s_lshl_b32 s40, s40, 12
    s_lshl_b32 s41, s{RB}, 7
    s_add_u32 s40, s40, s41
    s_add_u32 s47, s40, {hx(YT)}""")
    a(f"""v_lshrrev_b32 v{T0}, 2, v{VQ}
    v_and_b32 v{T1}, 2, v0
    v_lshl_add_u32 v{T1}, v{T1}, 1, v{T0}
    v_add_u32 v{T1}, s{W}, v{T1}
    v_and_b32 v{T1}, 7, v{T1}
    v_and_b32 v{T2}, 1, v{VG}
    v_lshl_or_b32 v{T1}, v{T2}, 3, v{T1}
    v_lshl_add_u32 v{T0}, v{VG}, 2, v{T0}
    v_lshlrev_b32 v{T0}, 8, v{T0}
    v_lshl_add_u32 v{T0}, v{T1}, 4, v{T0}
    v_and_b32 v{T1}, 1, v0
    v_lshl_add_u32 v{T0}, v{T1}, 3, v{T0}
    v_add_u32 v{VYR}, 61440, v{T0}
    s_lshl_b32 s46, s{CB}, 8
    s_add_u32 s46, s46, {hx(FL_Y)}
    v_mov_b32 v{T1}, 0""")
    XR = WREG + 60
    Y_AT, Y_CHK = 6, 9
    for i in range(12):
        wb = WREG + slot_of[i]*20; hb = HB[i % 3]
        post = []
        if i >= 1:
            j = i - 1
            if j + 3 < 12: post += h_ld(j + 3)
            if j <= 2: post += w2_reg(9 + j, j)
            if 3 <= j <= 6:
                sl = j - 3; d = WREG + slot_of[j+2]*20
                vb, off = (VLR, sl*5120) if sl < 3 else (VL3, 0)
                post += [f"ds_read_b128 v[{d+4*dt}:{d+4*dt+3}], v{vb} offset:{off+dt*1024}" for dt in range(5)]
            if j == 7:
                post += [f"buffer_load_dwordx4 v[{XR+4*q}:{XR+4*q+3}], v{VOX+q}, s[4:7], 0 offen" for q in range(3)]
        if o.wait and i == Y_AT: post.append(f"buffer_load_dword v{VPOLL}, v{T1}, s[12:15], s46 offen sc1")
        if i == Y_CHK:
            poll(a, o, VPOLL, T1, 12, "s46", 20, "1", first_issued=True, name="YF")
            for m in range(5):
                post.append(f"s_add_u32 m0, s73, {m*1024}\ns_add_u32 s40, s47, {m*16384}\nbuffer_load_dwordx4 v{VYD}, s[12:15], s40 offen sc1 lds")
        k = 0
        for t in range(4):
            for dt in range(5):
                c = A2 + (t*5+dt)*4
                src = "0" if (i == 0 and t > 0) else f"v[{c}:{c+3}]"
                a(f"v_mfma_f32_16x16x32_bf16 v[{c}:{c+3}], v[{wb+4*dt}:{wb+4*dt+3}], v[{hb+4*t}:{hb+4*t+3}], {src}")
                if k < len(post): a(post[k]); k += 1
        assert k == len(post)
    stamp(a, o, 7)
    for t in range(1, 4):
        for dt in range(5):
            c = A2 + (t*5+dt)*4
            a(f"ds_write_b128 v{VLR}, v[{c}:{c+3}] offset:{(t-1)*5120 + dt*1024}")
    for t in range(1, 4):
        a(f"s_xor_b32 s40, s{W}, {t}\ns_mul_i32 s40, s40, 15360\nv_add_u32 v{HB[0]+t}, s40, v{VL16}")
    a("s_waitcnt vmcnt(0) lgkmcnt(0)\ns_barrier")
    YR = HB[1]
    for dt in range(5):
        a(f"ds_read_b64_tr_b16 v[{YR+2*dt}:{YR+2*dt+1}], v{VYR} offset:{dt*4096}")
    for t in range(1, 4):
        for dt in range(5):
            c = A2 + (t*5+dt)*4
            a(f"ds_read_b128 v[{c}:{c+3}], v{HB[0]+t} offset:{(t-1)*5120 + dt*1024}")
    U = HB[2]
    for dt in range(5):
        c = A2 + dt*4
        for h in range(2):
            a(f"v_lshlrev_b32 v{U+2*h}, 16, v{YR+2*dt+h}\nv_and_b32 v{U+2*h+1}, 0xffff0000, v{YR+2*dt+h}")
        for h in range(2):
            a(f"v_pk_add_f32 v[{c+2*h}:{c+2*h+1}], v[{c+2*h}:{c+2*h+1}], v[{U+2*h}:{U+2*h+1}]")
    for t in range(1, 4):
        for dt in range(5):
            c = A2 + dt*4; s_ = A2 + (t*5+dt)*4
            for h in range(2):
                a(f"v_pk_add_f32 v[{c+2*h}:{c+2*h+1}], v[{c+2*h}:{c+2*h+1}], v[{s_+2*h}:{s_+2*h+1}]")
    a("s_waitcnt lgkmcnt(0)\ns_barrier")
    for dt in range(5):
        c = A2 + dt*4
        a(f"ds_write_b128 v{VTW}, v[{c}:{c+3}] offset:{dt*64}")
    R = A2 + 20
    for q in range(3):
        for h in range(2):
            a(f"ds_read_b128 v[{R+8*q+4*h}:{R+8*q+4*h+3}], v{VTR+q} offset:{16*h}")
    for q in range(3):
        for e in range(4):
            x = XR + 4*q + e; r = R + 8*q + 2*e
            a(f"v_lshlrev_b32 v{U}, 16, v{x}\nv_and_b32 v{U+1}, 0xffff0000, v{x}\nv_pk_add_f32 v[{r}:{r+1}], v[{r}:{r+1}], v[{U}:{U+1}]\nv_cvt_pk_bf16_f32 v{x}, v{r}, v{r+1}")
        a(f"buffer_store_dwordx4 v[{XR+4*q}:{XR+4*q+3}], v{VOX+q}, s[16:19], 0 offen {o.out_flags}")
    if o.prof:
        stamp(a, o, 8)
        a("s_waitcnt vmcnt(0)")
        stamp(a, o, 9)
        stamp_flush(a, o, 10, W, T0)
    a("s_endpgm")

def role_ssm(a, o):
    W, J = 3, 48
    KG = 15232
    UB = 4*KG
    UP = 4576
    LNI, W2T = UB, UB + 10752
    a("role_s:")
    stamp(a, o, 0)
    a("""s_load_dwordx2 s[4:5], s[0:1], 0
    s_load_dwordx2 s[8:9], s[0:1], 96
    s_load_dwordx2 s[12:13], s[0:1], 128
    s_load_dwordx2 s[28:29], s[0:1], 120
    s_load_dwordx16 s[32:47], s[0:1], 8""")
    if o.prio_s: a(f"s_setprio {o.prio_s}")
    if o.code_pf: code_prefetch(a, o, 2, 3, "role_s", o.s_bytes)
    a(f"""v_lshrrev_b32 v1, 6, v0
    v_and_b32 v0, 63, v0
    v_readfirstlane_b32 s{W}, v1
    s_sub_u32 s{J}, s2, 256""")
    srd_tail(a, 4, T*D*2); srd_tail(a, 8, F*D*2); srd_tail(a, 12, WS_END); srd_tail(a, 28, 256)
    VG, VQ, VI, VHI = 250, 251, 248, 249
    T0, T1, T2, VPOLL = 252, 253, 254, 255
    a(f"v_lshrrev_b32 v{VG}, 4, v0\nv_and_b32 v{VQ}, 15, v0\nv_and_b32 v{VI}, 31, v0\nv_lshrrev_b32 v{VHI}, 5, v0")
    if o.wait:
        SK = a.lab("ini")
        a(f"""s_lshl2_add_u32 s50, s{J}, s{W}
        s_cmp_lg_u32 s50, 1023
        s_cbranch_scc1 {SK}
        v_mov_b32 v4, 0
        v_mov_b32 v5, 0
        v_mov_b32 v6, 0
        v_mov_b32 v7, 0
        v_lshlrev_b32 v{T0}, 8, v0
        buffer_store_dwordx4 v[4:7], v{T0}, s[12:15], 0 offen sc1
        buffer_store_dwordx4 v[4:7], v{T0}, s[12:15], 0 offen offset:16 sc1
        v_mov_b32 v8, 1
        s_waitcnt vmcnt(0)
        s_mov_b64 exec, 1
        buffer_store_dword v8, off, s[28:31], 0 sc1
        s_mov_b64 exec, -1
        {SK}:""")
    TB = 49
    XR = 4
    a(f"""s_and_b32 s{TB}, s{J}, 7
    s_lshl_b32 s{TB}, s{TB}, 5
    s_lshr_b32 s50, s{J}, 3
    s_add_u32 s{TB}, s{TB}, s50
    s_lshl_b32 s50, s{TB}, 2
    s_add_u32 s50, s50, s{W}
    s_mul_i32 s50, s50, 2560
    v_mul_u32_u24 v{T0}, 1280, v{VHI}
    v_lshl_add_u32 v{T0}, v{VI}, 3, v{T0}""")
    for c in range(5):
        a(f"buffer_load_dwordx2 v[{XR+2*c}:{XR+2*c+1}], v{T0}, s[4:7], s50 offen offset:{256*c}")
    KS, DB = 51, 52
    a(f"""s_mul_i32 s{KS}, s{J}, 205
    s_lshr_b32 s{KS}, s{KS}, 10
    s_mul_i32 s50, s{KS}, 5
    s_sub_u32 s{DB}, s{J}, s50
    s_lshl2_add_u32 s50, s{KS}, s{W}
    s_mul_i32 s50, s50, {8*1280}
    s_lshl_b32 s53, s{DB}, 8
    s_add_u32 s50, s50, s53
    v_mul_u32_u24 v{T1}, 1280, v{VG}
    v_lshl_add_u32 v{T1}, v{VQ}, 4, v{T1}
    s_lshl_b32 s53, s{W}, 11
    s_add_u32 m0, s53, {W2T}
    buffer_load_dwordx4 v{T1}, s[8:11], s50 offen lds
    s_add_u32 s50, s50, {4*1280}
    s_add_u32 m0, s53, {W2T+1024}
    buffer_load_dwordx4 v{T1}, s[8:11], s50 offen lds""")
    CH = 54
    PAR = 228
    VDT, VDS = 246, 247
    a(f"""s_lshl2_add_u32 s{CH}, s{J}, s{W}
    s_cmp_ge_u32 s{J}, 160
    s_cbranch_scc1 s_nopar
    s_mul_i32 s50, s{CH}, 384
    v_lshl_add_u32 v{T2}, v0, 1, s50
    s_lshl_b32 s50, s{CH}, 1
    v_mov_b32 v{T1}, s50""")
    for i in range(18): a(f"v_mov_b32 v{PAR+i}, 0")
    a(f"global_load_ushort v{VDT}, v{T1}, s[44:45]\nglobal_load_ushort v{VDS}, v{T1}, s[46:47]")
    for p in range(3):
        for k in range(6):
            a(f"global_load_short_d16_hi v{PAR+6*p+k}, v{T2}, s[{32+2*k}:{33+2*k}] offset:{128*p} {o.par_flags}")
    a("s_nopar:")
    XF = 16
    SUM, SQ = 14, 15
    a(f"s_mov_b32 s50, 0x3f803f80\nv_mov_b32 v{SUM}, 0\nv_mov_b32 v{SQ}, 0")
    for k in range(10):
        a(f"v_dot2c_f32_bf16 v{SUM}, s50, v{XR+k}\nv_dot2c_f32_bf16 v{SQ}, v{XR+k}, v{XR+k}")
    stamp(a, o, 1)
    for k in range(10):
        a(f"v_lshlrev_b32 v{XF+2*k}, 16, v{XR+k}\nv_and_b32 v{XF+2*k+1}, 0xffff0000, v{XR+k}")
    for r in (8, 4, 2, 1):
        a(f"v_add_f32_dpp v{SUM}, v{SUM}, v{SUM} row_ror:{r} row_mask:0xf bank_mask:0xf\nv_add_f32_dpp v{SQ}, v{SQ}, v{SQ} row_ror:{r} row_mask:0xf bank_mask:0xf")
    a(f"""v_mov_b32 v{T0}, v{SUM}
    v_mov_b32 v{T1}, v{SQ}
    v_permlane16_swap_b32 v{SUM}, v{T0}
    v_permlane16_swap_b32 v{SQ}, v{T1}
    v_add_f32 v{SUM}, v{SUM}, v{T0}
    v_add_f32 v{SQ}, v{SQ}, v{T1}
    v_mul_f32 v{SUM}, {hx(fbits(1/640))}, v{SUM}
    v_mul_f32 v{SQ}, {hx(fbits(1/640))}, v{SQ}
    v_fma_f32 v{SQ}, -v{SUM}, v{SUM}, v{SQ}
    v_max_f32 v{SQ}, 0, v{SQ}""")
    bf16_round(a, SUM); bf16_round(a, SQ)
    a(f"v_add_f32 v{SQ}, {hx(fbits(1e-5))}, v{SQ}")
    bf16_round(a, SQ)
    a(f"v_sqrt_f32 v{SQ}, v{SQ}")
    bf16_round(a, SQ)
    a(f"v_rcp_f32 v{SQ}, v{SQ}")
    S = f"v[{SUM}:{SQ}]"
    for k in range(10):
        p = f"v[{XF+2*k}:{XF+2*k+1}]"
        a(f"v_pk_add_f32 {p}, {p}, {S} op_sel_hi:[1,0] neg_lo:[0,1] neg_hi:[0,1]")
    for k in range(10): a(f"v_cvt_pk_bf16_f32 v{XR+k}, v{XF+2*k}, v{XF+2*k+1}")
    for k in range(10):
        a(f"v_lshlrev_b32 v{XF+2*k}, 16, v{XR+k}\nv_and_b32 v{XF+2*k+1}, 0xffff0000, v{XR+k}")
    for k in range(10):
        p = f"v[{XF+2*k}:{XF+2*k+1}]"
        a(f"v_pk_mul_f32 {p}, {S}, {p} op_sel:[1,0] op_sel_hi:[1,1]")
    for k in range(10): a(f"v_cvt_pk_bf16_f32 v{XR+k}, v{XF+2*k}, v{XF+2*k+1}")
    a(f"""s_mul_i32 s50, s{W}, 2688
    s_add_u32 s50, s50, {LNI}
    v_mul_u32_u24 v{T0}, 1344, v{VHI}
    v_lshl_add_u32 v{T0}, v{VI}, 3, v{T0}
    v_add_u32 v{T0}, s50, v{T0}""")
    for c in range(5): a(f"ds_write_b64 v{T0}, v[{XR+2*c}:{XR+2*c+1}] offset:{256*c}")
    a(f"""v_lshrrev_b32 v{T0}, 2, v{VQ}
    v_and_b32 v{T1}, 3, v0
    v_lshlrev_b32 v{T1}, 3, v{T1}
    v_mul_u32_u24 v40, 1344, v{T0}
    v_lshl_add_u32 v40, v{VG}, 5, v40
    v_add_u32 v40, v40, v{T1}
    s_lshl_b32 s50, s{W}, 7
    s_add_u32 s50, s50, {LNI}
    v_add_u32 v40, s50, v40
    v_lshl_add_u32 v41, v{VG}, 3, v{T0}
    v_lshl_add_u32 v41, v41, 8, v{T1}
    s_lshl_b32 s50, s{W}, 6
    s_add_u32 s50, s50, {W2T}
    v_add_u32 v41, s50, v41
    v_lshrrev_b32 v42, 2, v0
    v_lshlrev_b32 v42, 14, v42
    v_lshl_add_u32 v42, v{T1}, 1, v42
    v_lshlrev_b32 v43, 4, v0""")
    a(f"""s_cmp_ge_u32 s{J}, 160
    s_cbranch_scc1 s_w0
    s_waitcnt vmcnt(20)
    s_branch s_w1
    s_w0:
    s_waitcnt vmcnt(0)
    s_w1:
    s_waitcnt lgkmcnt(0)
    s_barrier""")
    for m in range(3):
        for h in range(2):
            a(f"ds_read_b64_tr_b16 v[{16+4*m+2*h}:{17+4*m+2*h}], v40 offset:{m*512 + h*4*1344}")
    for i in range(2):
        for h in range(2):
            a(f"ds_read_b64_tr_b16 v[{28+4*i+2*h}:{29+4*i+2*h}], v41 offset:{i*32 + h*1024}")
    a(f"""s_lshl_b32 s50, s{W}, 18
    s_lshl_b32 s53, s{TB}, 6
    s_add_u32 s50, s50, s53
    s_add_u32 s50, s50, {hx(XN)}
    buffer_store_dwordx4 v[16:19], v42, s[12:15], s50 offen sc1
    s_add_u32 s50, s50, {hx(4<<18)}
    buffer_store_dwordx4 v[20:23], v42, s[12:15], s50 offen sc1
    s_add_u32 s50, s50, {hx(4<<18)}
    s_cmp_ge_u32 s{W}, 2
    s_cselect_b32 s50, 0x7ff00000, s50
    buffer_store_dwordx4 v[24:27], v42, s[12:15], s50 offen sc1""")
    for i in range(2):
        a(f"""s_lshl_b32 s50, s{DB}, 3
        s_lshl1_add_u32 s50, s{W}, s50
        s_add_u32 s50, s50, {i}
        s_mul_i32 s53, s50, 205
        s_lshr_b32 s53, s53, 10
        s_mul_i32 s55, s53, {48*5 - 5}
        s_add_u32 s50, s50, s55
        s_mul_i32 s55, s{KS}, 5
        s_add_u32 s50, s50, s55
        s_lshl_b32 s50, s50, 10
        s_add_u32 s50, s50, {hx(W2F)}
        s_cmp_ge_u32 s{J}, 240
        s_cselect_b32 s50, 0x7ff00000, s50
        buffer_store_dwordx4 v[{28+4*i}:{31+4*i}], v43, s[12:15], s50 offen sc1""")
    stamp(a, o, 2)
    def signal_pre():
        a("s_waitcnt vmcnt(0)\ns_barrier")
        if o.wait:
            SK = a.lab("sp")
            a(f"s_cmp_lg_u32 s{W}, 0\ns_cbranch_scc1 {SK}\nv_mov_b32 v{T1}, 0")
            poll(a, o, VPOLL, T1, 28, 0, 1, "1", name="RDS")
            a(f"""s_and_b32 s50, s{J}, 15
            s_lshl_b32 s50, s50, 8
            v_mov_b32 v{T1}, 1
            s_mov_b64 exec, 1
            buffer_atomic_add v{T1}, off, s[12:15], s50 sc1
            s_mov_b64 exec, -1
            {SK}:""")
    a(f"s_cmp_lt_u32 s{J}, 160\ns_cbranch_scc1 s_ssm")
    signal_pre()
    if o.prof:
        stamp(a, o, 3)
        stamp_flush(a, o, 4, W, T0)
    a("s_endpgm\ns_ssm:")
    DA = 4
    FA, FB = 20, 52
    Z, CC, W1, W8, WW, W16 = 84, 86, 88, 90, 92, 94
    TMP = [96, 98]
    PK = [100, 101]
    VAL = 102
    DT2, DTC = 140, 142
    VWA, VRA, VRB = 144, 145, 146
    a(f"""v_lshlrev_b32 v{VDT}, 16, v{VDT}
    v_mul_f32 v{VDT}, {hx(fbits(math.log2(math.e)))}, v{VDT}
    v_exp_f32 v{VDT}, v{VDT}
    v_lshlrev_b32 v{VDS}, 16, v{VDS}""")
    bf16_round(a, VDT)
    a(f"""v_mul_f32 v{DT2}, {hx(fbits(math.log2(math.e)))}, v{VDT}
    v_mul_f32 v{DT2+1}, {hx(fbits(1/(2*math.pi)))}, v{VDT}
    s_mul_i32 s56, s{W}, {KG}
    v_lshl_add_u32 v{VWA}, v0, 2, s56
    v_mul_u32_u24 v{T0}, 272, v{VI}
    v_lshl_add_u32 v{T0}, v{VHI}, 4, v{T0}
    v_add_u32 v{VRB}, s56, v{T0}
    v_subrev_u32 v{T1}, 16, v{VI}
    v_cmp_lt_u32 vcc, 24, v{VI}
    v_cndmask_b32 v{T1}, v{VI}, v{T1}, vcc""")
    for ln, row in ((5, 4), (7, 12), (13, 12), (24, 13)):
        a(f"v_writelane_b32 v{T1}, {row}, {ln}\nv_writelane_b32 v{T1}, {row}, {ln+32}")
    a(f"""v_mul_u32_u24 v{T0}, 272, v{T1}
    v_lshl_add_u32 v{T0}, v{VHI}, 4, v{T0}
    v_add_u32 v{VRA}, s56, v{T0}
    v_mov_b32 v{T0}, 0x3f80
    ds_write_b32 v{VWA}, v{T0}
    s_mov_b32 s58, {hx(fbits(8.0))}
    s_mov_b32 s59, {hx(fbits(256.0))}
    s_mov_b32 s57, 0""")
    cp = lambda r: f"v[{r}:{r+1}]"
    def cmul1(t, p, w): return f"v_pk_mul_f32 {cp(t)}, {cp(p)}, {cp(w)} op_sel_hi:[1,0]"
    def cmul2(d, t, p, w): return f"v_pk_fma_f32 {cp(d)}, {cp(p)}, {cp(w)}, {cp(t)} op_sel:[1,1,0] op_sel_hi:[0,1,1] neg_lo:[1,0,0]"
    AROW = {0:0, 1:1, 2:2, 3:3, 4:8, 5:9, 6:10, 7:11, 256:4, 258:6, 260:12, 262:14, 512:16, 516:17, 1024:18, 1536:19,
            768:20, 772:21, 1280:22, 1792:23, 2048:13}
    def emit_val(reg, kind, idx, pk):
        if kind == "A": return [f"v_cvt_pk_bf16_f32 v{pk}, v{reg}, -v{reg+1}", f"ds_write_b32 v{VWA}, v{pk} offset:{(32+AROW[idx])*272}"]
        return [f"v_cvt_pk_bf16_f32 v{pk}, v{reg}, v{reg+1}", f"ds_write_b32 v{VWA}, v{pk} offset:{idx*272}"]
    a(".p2align 3\ns_kloop:")
    P = PAR
    a(f"""v_pk_mul_f32 {cp(Z)}, {cp(P)}, {cp(DT2)}
    {cmul1(TMP[0], P+2, P+4)}
    v_pk_mul_f32 {cp(W8)}, {cp(Z)}, s[58:59] op_sel_hi:[1,0]
    v_pk_mul_f32 {cp(WW)}, s[58:59], {cp(Z)} op_sel:[1,0] op_sel_hi:[1,1]
    {cmul2(CC, TMP[0], P+2, P+4)}""")
    M = VAL
    for k, (src, dst) in enumerate(((Z, W1), (W8, W8), (WW, WW))):
        a(f"v_exp_f32_e64 v{M+2*k}, v{src}\nv_fract_f32_e64 v{M+2*k+1}, v{src+1}")
    a(f"v_pk_mul_f32 {cp(CC)}, {cp(CC)}, v[{VDT}:{VDT+1}] op_sel_hi:[1,0]")
    for k, dst in enumerate((W1, W8, WW)):
        a(f"v_cos_f32_e64 v{dst}, v{M+2*k+1}\nv_sin_f32_e64 v{dst+1}, v{M+2*k+1}")
    for i in range(12): a(f"v_mov_b32_e64 v{P+i}, v{P+6+i}")
    for k, dst in enumerate((W1, W8, WW)):
        a(f"v_pk_mul_f32 {cp(dst)}, {cp(dst)}, {cp(M+2*k)} op_sel_hi:[1,0]")
    for t in emit_val(CC, "A", 0, PK[0]) + emit_val(W8, "B", 1, PK[1]): a(t)
    tasks = []
    for e in range(1, 8): tasks.append((f"R{e}", f"R{e-1}", "W1", "A", e))
    for k in range(1, 9): tasks.append((f"G{k}", f"G{k-1}" if k > 1 else "R0", "WW", "A", 256*k))
    tasks += [("S258", "R2", "WW", "A", 258), ("S260", "R4", "WW", "A", 260), ("S262", "R6", "WW", "A", 262),
              ("S516", "S260", "WW", "A", 516), ("S772", "S516", "WW", "A", 772)]
    tasks.append(("E2", "E1", "E1", "B", 2))
    for j in range(3, 32): tasks.append((f"E{j}", f"E{j-2}", "E2", "B", j))
    order = []
    R = [t for t in tasks if t[0][0] == "R"]; G = [t for t in tasks if t[0][0] == "G"]; S_ = [t for t in tasks if t[0][0] == "S"]; E = [t for t in tasks if t[0][0] == "E"]
    for i in range(7): order.append((R[i], G[i]))
    order.append((G[7], E[0])); order.append((S_[0], S_[1])); order.append((S_[2], S_[3])); order.append((S_[4], E[1]))
    for i in range(2, 30, 2): order.append((E[i], E[i+1]))
    assert sum(len(x) for x in order) == 50
    loc = {"R0": CC, "E1": W8, "W1": W1, "WW": WW}
    lastuse = {}
    for pi, pr in enumerate(order):
        for t in pr: lastuse[t[1]] = pi; lastuse[t[2]] = pi
    free = list(range(VAL, VAL+38, 2))
    kmf = [f"v_mfma_f32_32x32x16_bf16 v[{DA}:{DA+15}], v[{FA+4*k}:{FA+4*k+3}], v[{FB+4*k}:{FB+4*k+3}], v[{DA}:{DA+15}]" for k in range(8)]
    mq = list(kmf)
    for pi, pr in enumerate(order):
        for t in pr: loc[t[0]] = free.pop(0)
        for s_, t in enumerate(pr): a(cmul1(TMP[s_], loc[t[1]], loc[t[2]]))
        for s_, t in enumerate(pr): a(cmul2(loc[t[0]], TMP[s_], loc[t[1]], loc[t[2]]))
        ev = [emit_val(loc[t[0]], t[3], t[4], PK[s_]) for s_, t in enumerate(pr)]
        a(ev[0][0]); a(ev[1][0]); a(ev[0][1]); a(ev[1][1])
        if mq and pi % 2 == 1: a(mq.pop(0))
        for nm in list(loc):
            if loc[nm] >= VAL and lastuse.get(nm, -1) <= pi:
                free.append(loc.pop(nm))
    assert not mq
    for k in range(8):
        a(f"ds_read_b128 v[{FA+4*k}:{FA+4*k+3}], v{VRA} offset:{32*272 + 32*k}\nds_read_b128 v[{FB+4*k}:{FB+4*k+3}], v{VRB} offset:{32*k}")
    a("s_cmp_lg_u32 s57, 0\ns_cbranch_scc1 s_knz")
    for i in range(16): a(f"v_mov_b32 v{DA+i}, 0")
    signal_pre()
    a("s_knz:\ns_add_u32 s57, s57, 1\ns_cmp_lt_u32 s57, 3\ns_cbranch_scc1 s_kloop")
    stamp(a, o, 3)
    UR = 160
    a(f"v_lshlrev_b32 v{T2}, 8, v0")
    if o.wait: a(f"s_barrier\ns_mov_b64 exec, 0xffff\nbuffer_load_dword v{VPOLL}, v{T2}, s[12:15], 0 offen sc1\ns_mov_b64 exec, -1")
    for m in kmf: a(m)
    a(f"""s_lshl_b32 s50, s{J}, 14
    s_lshl_b32 s53, s{W}, 12
    s_add_u32 s50, s50, s53
    s_add_u32 s50, s50, {hx(XN)}
    v_lshlrev_b32 v{T0}, 4, v0""")
    poll(a, o, VPOLL, T2, 12, 0, 16, "0xffff", first_issued=True, name="PRS")
    for m in range(4):
        a(f"buffer_load_dwordx4 v[{UR+4*m}:{UR+4*m+3}], v{T0}, s[12:15], s50 offen offset:{1024*m} sc1")
    stamp(a, o, 4)
    Tt = [DA+i for i in range(8)]; Q0, Q1, P0, P1, P2 = DA+8, DA+9, DA+10, DA+11, DA+12
    T8, Q0n, P0n, P1n, M0_, M1_ = 84, 85, 86, 87, 88, 89
    dppm = "row_mask:0xf bank_mask:0xf"
    for dst, cur, nxt in ((T8, Tt[0], Q0), (Q0n, Q0, P0), (P0n, P0, P1), (P1n, P1, P2)):
        a(f"v_mov_b32_dpp v{dst}, v{nxt} wave_rol:1 {dppm}")
    for dst, cur, nxt in ((T8, Tt[0], Q0), (Q0n, Q0, P0), (P0n, P0, P1), (P1n, P1, P2)):
        a(f"v_mov_b32_dpp v{dst}, v{cur} wave_shl:1 {dppm}")
    a(f"""s_mov_b32 s60, 0
    s_mov_b32 s61, -1
    s_mov_b32 s62, 0xaaaaaaaa
    s_mov_b32 s63, 0xaaaaaaaa
    v_cndmask_b32 v{Tt[7]}, v{Tt[7]}, v{T8}, s[60:61]
    v_cndmask_b32 v{M0_}, v{P0}, v{P0n}, s[62:63]
    v_cndmask_b32 v{M1_}, v{P1}, v{P1n}, s[62:63]
    s_mov_b64 exec, 1
    v_add_f32 v{Tt[0]}, v{Tt[0]}, v{VDS}
    s_mov_b64 exec, -1
    v_sub_u32 v{T0}, 63, v0
    v_lshl_add_u32 v{T0}, v{T0}, 4, s56""")
    CB_ = 4160
    blocks = [(Tt + [T8], 3072), ([Q0]*3 + [Q1]*3 + [Q0n]*3, 2048), ([P0]*4 + [M0_] + [P0n]*4, 1024), ([P1]*4 + [M1_] + [P1n]*4, 0)]
    ob = 92
    for e, off in blocks:
        for cpy in range(2):
            for i in range(4):
                hi_l = 7 - 2*i + cpy
                a(f"v_cvt_pk_bf16_f32 v{ob+i}, v{e[hi_l]}, v{e[hi_l-1]}")
            a(f"ds_write_b128 v{T0}, v[{ob}:{ob+3}] offset:{off + cpy*CB_}")
            ob = 92 + (ob - 92 + 4) % 16
    a(f"""v_mov_b32 v108, 0
    v_mov_b32 v109, 0
    v_mov_b32 v110, 0
    v_mov_b32 v111, 0
    v_lshl_add_u32 v{T0}, v0, 4, s56
    s_mul_i32 s60, s{W}, {UP}
    s_add_u32 s60, s60, {UB}
    v_lshl_add_u32 v{T1}, v0, 4, s60
    s_mov_b64 exec, 0x3fffffff
    ds_write_b128 v{T1}, v[108:111]
    s_mov_b64 exec, 3
    ds_write_b128 v{T0}, v[108:111] offset:4096
    s_mov_b64 exec, 1
    v_cvt_pk_bf16_f32 v108, v{Tt[0]}, 0
    s_mov_b64 exec, 3
    ds_write_b128 v{T0}, v[108:111] offset:{4096+CB_}
    s_mov_b64 exec, -1""")
    a(f"""v_and_b32 v{T0}, 3, v0
    v_mul_u32_u24 v{T0}, {UP}, v{T0}
    v_lshrrev_b32 v{T1}, 2, v0
    v_lshl_add_u32 v{T0}, v{T1}, 4, v{T0}
    s_lshl_b32 s50, s{W}, 10
    s_add_u32 s50, s50, {UB + 480}
    v_add_u32 v{T0}, s50, v{T0}""")
    for m in range(4): a(f"ds_write_b128 v{T0}, v[{UR+4*m}:{UR+4*m+3}] offset:{256*m}")
    VA = 228
    VB = 232
    a(f"""v_lshlrev_b32 v{T0}, 3, v{VG}
    v_sub_u32 v{T0}, v{T0}, v{VQ}
    v_add_u32 v{T0}, {2048-16}, v{T0}
    v_lshrrev_b32 v{T0}, 1, v{T0}
    v_and_b32 v{T1}, 1, v0
    v_xor_b32 v{T1}, 1, v{T1}
    v_mul_u32_u24 v{T1}, {CB_}, v{T1}
    v_lshl_add_u32 v{T0}, v{T0}, 2, v{T1}
    v_add_u32 v{T0}, s56, v{T0}""")
    for cpair in range(4): a(f"v_subrev_u32 v{VA+cpair}, {512*(2*cpair+1)}, v{T0}")
    a(f"""v_lshlrev_b32 v{T0}, 5, v{VQ}
    v_lshl_add_u32 v{T0}, v{VG}, 4, v{T0}
    s_add_u32 s60, s60, {480-32}
    v_add_u32 v{VB}, s60, v{T0}""")
    AC = 4; SA = [36, 100]; SB = [68, 132]
    for i in range(32): a(f"v_mov_b32 v{AC+i}, 0")
    a("s_waitcnt lgkmcnt(0)\ns_barrier")
    stamp(a, o, 5)
    def crd(st):
        r = []
        for c in range(8):
            o0 = 0 if c & 1 else 128
            d = SA[st] + 4*c
            r.append(f"ds_read_b128 v[{SB[st]+4*c}:{SB[st]+4*c+3}], v{VB} offset:{512*c}")
            r.append(f"ds_read2_b32 v[{d}:{d+1}], v{VA+c//2} offset0:{o0} offset1:{o0+1}")
            r.append(f"ds_read2_b32 v[{d+2}:{d+3}], v{VA+c//2} offset0:{o0+2} offset1:{o0+3}")
        for i in range(5): r.append(f"v_subrev_u32_e64 v{VA+i}, 64, v{VA+i}")
        return r
    for t in crd(0): a(t)
    a("s_mov_b32 s57, 0\n.p2align 3\ns_cloop:")
    for st in range(2):
        a("s_waitcnt lgkmcnt(0)\ns_nop 0")
        rd = crd(st ^ 1)
        for c in range(8):
            for nu in range(8 - c):
                n = nu + c
                a(f"v_mfma_f32_16x16x32_bf16 v[{AC+4*n}:{AC+4*n+3}], v[{SA[st]+4*c}:{SA[st]+4*c+3}], v[{SB[st]+4*nu}:{SB[st]+4*nu+3}], v[{AC+4*n}:{AC+4*n+3}]")
                if rd: a(rd.pop(0))
        assert not rd
    a("s_add_u32 s57, s57, 1\ns_cmp_lt_u32 s57, 4\ns_cbranch_scc1 s_cloop")
    stamp(a, o, 6)
    a(f"""v_lshrrev_b32 v{T0}, 2, v{VQ}
    v_lshlrev_b32 v{T0}, 7, v{T0}
    v_and_b32 v{T1}, 3, v0
    v_lshl_add_u32 v{T0}, v{T1}, 4, v{T0}
    v_lshl_add_u32 v{T0}, v{VHI}, 6, v{T0}
    v_and_b32 v{T1}, 1, v{VG}
    v_lshl_add_u32 v{T0}, v{T1}, 9, v{T0}
    s_lshl_b32 s50, s{CH}, 12
    s_add_u32 s50, s50, {hx(YT)}
    s_waitcnt lgkmcnt(0)""")
    for m in range(4):
        ob = 36 + 4*m
        for i in range(4): a(f"v_cvt_pk_bf16_f32 v{ob+i}, v{AC+8*m+2*i}, v{AC+8*m+2*i+1}")
        a(f"v_permlane16_swap_b32 v{ob}, v{ob+2}\nv_permlane16_swap_b32 v{ob+1}, v{ob+3}")
        a(f"buffer_store_dwordx4 v[{ob}:{ob+3}], v{T0}, s[12:15], s50 offen offset:{1024*m} sc1")
    if o.wait:
        SK = a.lab("ys")
        a(f"""s_waitcnt vmcnt(0)
        s_barrier
        s_cmp_lg_u32 s{W}, 0
        s_cbranch_scc1 {SK}
        s_mul_i32 s50, s{J}, 205
        s_lshr_b32 s50, s50, 12
        s_lshl_b32 s50, s50, 8
        s_add_u32 s50, s50, {hx(FL_Y)}
        v_mov_b32 v{T1}, 1
        s_mov_b64 exec, 1
        buffer_atomic_add v{T1}, off, s[12:15], s50 sc1
        s_mov_b64 exec, -1
        {SK}:""")
    if o.prof:
        stamp(a, o, 7)
        stamp_flush(a, o, 8, W, T0)
    a("s_endpgm")

HEADER = open("cdna_kernels/" + NAME + ".s.ref").read().split("; Override launch")[0]

def build(o):
    o.g_bytes = getattr(o, "g_bytes", 16384); o.s_bytes = getattr(o, "s_bytes", 8192)
    a = Asm()
    k = NAME + "_kernel"
    a(f"{k}:")
    a("s_cmp_ge_u32 s2, 512\ns_cbranch_scc1 k_end\ns_cmp_ge_u32 s2, 256\ns_cbranch_scc1 role_s")
    role_gemm(a, o)
    a(".p2align 6")
    role_ssm(a, o)
    a("k_end:\ns_endpgm")
    body = a.finish([k], verbose=True)
    return f"""{HEADER}; @launch grid=(512,1,1) block=(256,1,1) lds={LDS_BYTES}
.amdgcn_target "amdgcn-amd-amdhsa--gfx950"
.text
.globl {k}
.p2align 8
.type {k},@function
{body}
.section .rodata,"a"
.p2align 6
.amdhsa_kernel {k}
  .amdhsa_next_free_vgpr 256
  .amdhsa_next_free_sgpr 102
  .amdhsa_accum_offset 256
  .amdhsa_group_segment_fixed_size 0
  .amdhsa_kernarg_size 136
  .amdhsa_user_sgpr_count 2
  .amdhsa_user_sgpr_kernarg_segment_ptr 1
  .amdhsa_system_sgpr_workgroup_id_x 1
.end_amdhsa_kernel
"""

if __name__ == "__main__":
    o = Opt()
    out = sys.argv[1]
    for kv in sys.argv[2:]:
        k, v = kv.split("=")
        cur = getattr(o, k, None)
        setattr(o, k, v if isinstance(cur, str) else (bool(int(v)) if isinstance(cur, bool) else int(v)))
    open(out, "w").write(build(o))
```

```python
import sys, math, struct
from asmlib import Asm, vr, sr

NAME = "parallel_sum__ssm_conv_s4__mixer_channel_mlp__prompt"
T, D, F, NM = 2048, 640, 1536, 192
FL_PRE, FL_Y, FL_H = 0x0, 0x1000, 0x2000
XN, YT, W2F, HH, PROFO, WS_END = 0x10000, 0x290000, 0x510000, 0x700000, 0xD00000, 0xD40000
STATS = 0x8000
LDS_BYTES = 81920

def fbits(x): return struct.unpack("<I", struct.pack("<f", x))[0]
def hx(x): return f"0x{x & 0xffffffff:x}"

class Opt:
    wait = True
    prof = False
    spin = 200000
    rot1 = 5
    prio_g = 2
    prio_s = 0
    out_flags = ""
    par_flags = ""
    code_pf = True
    depth = 4
    sleep = 4
    ready_at = 8
    pre_at = 12
    pre_chk = 16
    sig_pair = 6
    gelu_pk = False
    only = ""

def srd_tail(a, s, size):
    a(f"s_mov_b32 s{s+2}, {hx(size)}\ns_mov_b32 s{s+3}, 0x20000")

class VM:
    def __init__(self): self.l = []
    def add(self, tag, n=1): self.l += [tag]*n
    def cnt(self, *tags):
        last = max(i for i, t in enumerate(self.l) if t in tags)
        return len(self.l) - 1 - last

def stamp(a, o, idx, base=80):
    if o.prof:
        a(f"s_memrealtime s[{base+2*idx}:{base+2*idx+1}]")
        if idx == 0: a("s_memtime s[100:101]")

def stamp_flush(a, o, n, wreg, vt, base=80):
    if not o.prof: return
    a("s_memtime s[74:75]\ns_waitcnt lgkmcnt(0)\ns_sub_u32 s74, s74, s100")
    a(f"s_lshl_b32 s78, s2, 2\ns_add_u32 s78, s78, s{wreg}\ns_lshl_b32 s78, s78, 6\ns_add_u32 s78, s78, {hx(PROFO)}")
    for i in range(n):
        a(f"v_mov_b32 v{vt}, s{base+2*i}\nbuffer_store_dword v{vt}, off, s[12:15], s78 offset:{4*i}")
    a(f"v_mov_b32 v{vt}, s74\nbuffer_store_dword v{vt}, off, s[12:15], s78 offset:60")

def poll(a, o, vdst, voff, srd, soff, expect, mask, first_issued=False, name="P"):
    if not o.wait: return
    L = a.lab(name); X = a.lab(name + "x"); C = a.lab(name + "c")
    a(f"s_mov_b64 exec, {mask}\ns_mov_b32 s76, 0")
    if first_issued: a(f"s_branch {C}")
    else: a(f"s_branch {L}f")
    a(f"{L}:")
    if o.sleep: a(f"s_sleep {o.sleep}")
    a(f"{L}f:")
    a(f"buffer_load_dword v{vdst}, v{voff}, s[{srd}:{srd+3}], {soff} offen sc1")
    a("s_waitcnt vmcnt(0)")
    a(f"{C}:")
    a(f"v_cmp_ne_u32 vcc, {expect}, v{vdst}")
    a(f"s_add_u32 s76, s76, 1\ns_cmp_gt_u32 s76, {o.spin}\ns_cbranch_scc1 {X}")
    a(f"s_cbranch_vccnz {L}\n{X}:\ns_mov_b64 exec, -1")

def bf16_round(a, v):
    a(f"v_cvt_pk_bf16_f32 v{v}, v{v}, v{v}\nv_and_b32 v{v}, 0xffff0000, v{v}")

def code_prefetch(a, o, vt, vd, lab, nbytes):
    if not o.code_pf: return
    a(f"s_getpc_b64 s[74:75]")
    a(f"v_lshlrev_b32 v{vt}, 7, v0")
    a(f"v_min_u32 v{vt}, {hx(nbytes-4)}, v{vt}")
    a(f"global_load_dword v{vd}, v{vt}, s[74:75]")

def role_gemm(a, o):
    W = 3
    RB, CB, RBL, CBL = 32, 33, 34, 35
    KX, KW = 36, 37
    XS, WS_ = [61440, 69632], [i*12288 for i in range(5)]
    a("role_g:\ns_cmp_ge_u32 s2, %d\ns_cbranch_scc1 k_end" % (0 if o.only == "s" else 512))
    stamp(a, o, 0)
    a("""s_load_dwordx2 s[4:5], s[0:1], 0
    s_load_dwordx2 s[8:9], s[0:1], 80
    s_load_dwordx2 s[12:13], s[0:1], 128
    s_load_dwordx2 s[16:17], s[0:1], 112
    s_load_dwordx2 s[20:21], s[0:1], 88
    s_load_dwordx2 s[24:25], s[0:1], 104
    s_load_dwordx2 s[28:29], s[0:1], 120""")
    a(f"s_setprio {o.prio_g}")
    vm = VM()
    if o.code_pf:
        code_prefetch(a, o, 231, 3, "role_g", o.g_bytes); vm.add("pf")
    a(f"""v_lshrrev_b32 v1, 6, v0
    v_and_b32 v0, 63, v0
    v_readfirstlane_b32 s{W}, v1
    s_bfe_u32 s{RBL}, s2, 0x30005
    s_bfe_u32 s{CBL}, s2, 0x20003
    s_bfe_u32 s{RB}, s2, 0x20001
    s_lshl3_add_u32 s{RB}, s{RB}, s{RBL}
    s_and_b32 s{CB}, s2, 1
    s_lshl2_add_u32 s{CB}, s{CB}, s{CBL}""")
    srd_tail(a, 4, T*D*2); srd_tail(a, 8, D*F*2); srd_tail(a, 12, WS_END); srd_tail(a, 16, T*D*2)
    srd_tail(a, 20, F*2); srd_tail(a, 24, D*2); srd_tail(a, 28, 256)
    ACC = 4
    CS = 52
    FR = [64, 92]
    B1R = 120
    WREG = 128
    VXO = 1
    VWO = 228
    VXR = 126
    ST = 232
    VWR = 241
    ONES = 244
    VL16, VL16B = 248, 249
    VG, VQ = 250, 251
    T0, T1, T2 = 252, 253, 254
    VPOLL = 255
    a(f"v_lshrrev_b32 v{VG}, 4, v0\nv_and_b32 v{VQ}, 15, v0")
    a(f"""s_lshl_b32 s40, s{RB}, 6
    s_lshl4_add_u32 s40, s{W}, s40
    s_mul_i32 s40, s40, 1280
    v_lshrrev_b32 v{T0}, 3, v0
    v_mul_u32_u24 v{T0}, 1280, v{T0}
    v_and_b32 v{T1}, 7, v0
    v_xor_b32 v{T1}, v{T1}, v{VG}
    v_lshl_add_u32 v{T2}, v{T1}, 4, v{T0}
    v_add_u32 v{VXO}, s40, v{T2}
    v_xor_b32 v{T1}, 4, v{T1}
    v_lshl_add_u32 v{T2}, v{T1}, 4, v{T0}
    s_add_u32 s40, s40, {8*1280}
    v_add_u32 v{VXO+1}, s40, v{T2}""")
    a(f"""s_add_u32 s40, s{RBL}, s{CBL}
    s_and_b32 s40, s40, 1
    s_mul_i32 s40, s40, {o.rot1}
    s_lshl_b32 s{KX}, s40, 7
    s_mul_i32 s{KW}, s40, {2*98304}
    s_lshl_b32 s38, s{W}, 11
    s_mul_i32 s39, s{W}, 3072""")
    def dma_x(j):
        g = []
        for n in range(2):
            t = f"s_add_u32 m0, s38, {XS[j&1] + n*1024}\nbuffer_load_dwordx4 v{VXO+n}, s[4:7], s{KX} offen lds"
            if n == 1: t += f"\ns_add_u32 s{KX}, s{KX}, 128\ns_cmp_eq_u32 s{KX}, 1280\ns_cselect_b32 s{KX}, 0, s{KX}"
            g.append((t, f"x{j}"))
        return g
    def dma_w(s):
        g = []
        for n in range(3):
            t = f"s_add_u32 m0, s39, {WS_[s%5] + n*1024}\nbuffer_load_dwordx4 v{VWO+n}, s[8:11], s{KW} offen lds"
            if n == 2: t += f"\ns_add_u32 s{KW}, s{KW}, 98304\ns_cmp_eq_u32 s{KW}, {20*98304}\ns_cselect_b32 s{KW}, 0, s{KW}"
            g.append((t, f"w{s}"))
        return g
    for t, tag in dma_x(0): a(t); vm.add(tag)
    a(f"""s_mul_i32 s40, s{W}, {8*3072}
    s_mul_i32 s41, s{CB}, 384
    s_add_u32 s40, s40, s41
    s_and_b32 s41, s{W}, 1
    s_lshl_b32 s41, s41, 2""")
    for n in range(3):
        a(f"""v_add_u32 v{T0}, {64*n}, v0
        v_mul_u32_u24 v{T1}, 2731, v{T0}
        v_lshrrev_b32 v{T1}, 16, v{T1}
        v_mul_u32_u24 v{T2}, 24, v{T1}
        v_sub_u32 v{T0}, v{T0}, v{T2}
        v_and_b32 v{T2}, 2, v{T1}
        v_or_b32 v{T2}, s41, v{T2}
        v_xor_b32 v{T0}, v{T0}, v{T2}
        v_mul_u32_u24 v{T1}, 3072, v{T1}
        v_lshl_add_u32 v{T0}, v{T0}, 4, v{T1}
        v_add_u32 v{VWO+n}, s40, v{T0}""")
    pro = [dma_w(0), dma_w(1)] + ([dma_x(1)] if o.depth >= 3 else []) + [dma_w(i) for i in range(2, o.depth)]
    for grp in pro:
        for t, tag in grp: a(t); vm.add(tag)
    stamp(a, o, 1)
    a(f"""s_mul_i32 s40, s{CB}, 384
    s_mul_i32 s41, s{W}, 96
    s_add_u32 s40, s40, s41
    v_lshlrev_b32 v{T0}, 3, v{VG}""")
    for n in range(3):
        a(f"buffer_load_dwordx2 v[{B1R+2*n}:{B1R+2*n+1}], v{T0}, s[20:23], s40 offen offset:{32*n}"); vm.add("b1")
    a(f"""v_lshrrev_b32 v{T0}, 1, v{VQ}
    v_xor_b32 v{T0}, v{T0}, v{VG}
    v_lshlrev_b32 v{T0}, 4, v{T0}
    v_lshl_add_u32 v{T0}, v{VQ}, 7, v{T0}""")
    a(f"v_add_u32 v{VXR}, {XS[0]}, v{T0}\nv_xor_b32 v{VXR+1}, 64, v{VXR}")
    a(f"""v_lshrrev_b32 v{T0}, 2, v{VQ}
    v_lshl_add_u32 v{T1}, v{VG}, 3, v{T0}
    v_mul_u32_u24 v{T1}, 384, v{T1}
    v_and_b32 v{T2}, 3, v0
    v_lshl_add_u32 v{T1}, v{T2}, 3, v{T1}
    v_lshrrev_b32 v{T0}, 1, v{T0}
    v_and_b32 v{T2}, 1, v{VG}
    v_lshl_or_b32 v{T0}, v{T2}, 1, v{T0}
    s_mul_i32 s40, s{W}, 3""")
    for n in range(3):
        a(f"s_add_u32 s41, s40, {n}\nv_xor_b32 v{T2}, s41, v{T0}\nv_lshl_add_u32 v{VWR+n}, v{T2}, 5, v{T1}")
    a(f"s_mov_b32 s42, 0x3f803f80")
    for i in range(4): a(f"v_mov_b32 v{ONES+i}, s42")
    a(f"v_lshlrev_b32 v{VL16}, 4, v0\nv_add_u32 v{VL16B}, 4096, v{VL16}")
    SH, SW = 48, 60
    a(f"""s_add_u32 s40, s{RBL}, s{CBL}
    s_and_b32 s40, s40, 3
    s_mul_i32 s40, s40, 3
    s_mul_i32 s41, s{W}, 6
    s_mul_i32 s43, s{RB}, {48*4096}
    s_add_u32 s43, s43, {hx(HH)}
    s_mul_i32 s44, s{CB}, {48*5120}
    s_add_u32 s44, s44, {hx(W2F)}""")
    for i in range(12):
        a(f"""s_cmp_ge_u32 s40, 6
        s_cselect_b32 s45, 18, 0
        s_add_u32 s45, s45, s40
        s_add_u32 s45, s45, s41
        s_lshl_b32 s46, s45, 12
        s_add_u32 s{SH+i}, s46, s43
        s_mul_i32 s46, s45, 5120
        s_add_u32 s{SW+i}, s46, s44
        s_add_u32 s40, s40, 1
        s_cmp_eq_u32 s40, 12
        s_cselect_b32 s40, 0, s40""")
    def w2_reg(i, slot):
        r = []
        for dt in range(5):
            d = WREG + slot*20 + dt*4
            if dt < 4: r.append(f"buffer_load_dwordx4 v[{d}:{d+3}], v{VL16}, s[12:15], s{SW+i} offen offset:{dt*1024} sc1")
            else: r.append(f"buffer_load_dwordx4 v[{d}:{d+3}], v{VL16B}, s[12:15], s{SW+i} offen sc1")
        return r
    a(f"s_mul_i32 s72, s{W}, 15360\ns_mul_i32 s73, s{W}, 5120\ns_add_u32 s73, s73, 61440")
    def w2_lds(i, slot):
        base = f"s72, {slot*5120}" if slot < 3 else "s73, 0"
        base4 = f"s72, {slot*5120+4096}" if slot < 3 else "s73, 4096"
        r = []
        for dt in range(5):
            if dt == 0: r.append(f"s_add_u32 m0, {base}\nbuffer_load_dwordx4 v{VL16}, s[12:15], s{SW+i} offen sc1 lds")
            elif dt < 4: r.append(f"buffer_load_dwordx4 v{VL16}, s[12:15], s{SW+i} offen offset:{dt*1024} sc1 lds")
            else: r.append(f"s_add_u32 m0, {base4}\nbuffer_load_dwordx4 v{VL16B}, s[12:15], s{SW+i} offen sc1 lds")
        return r
    pf_reg = [t for i in range(5) for t in w2_reg(i, i)]
    pf_lds = [t for i in range(4) for t in w2_lds(5+i, i)]
    def reads(s):
        fs = FR[s & 1]; r = []
        for n in range(3):
            for h in range(2):
                r.append(f"ds_read_b64_tr_b16 v[{fs+4*n+2*h}:{fs+4*n+2*h+1}], v{VWR+n} offset:{WS_[s%5] + h*1536}")
        for i in range(4):
            assert XS[(s>>1)&1] < 65536 or True
            r.append((i, s))
        return r
    def rd_text(x):
        if isinstance(x, str): return x
        i, s = x; fs = FR[s & 1]
        return f"ds_read_b128 v[{fs+12+4*i}:{fs+15+4*i}], v{VXR+(s&1)} offset:{XS[(s>>1)&1]-XS[0]+i*2048}"
    def mfmas(s):
        fs = FR[s & 1]; r = []
        for n in range(3):
            for i in range(4):
                c = ACC + (n*4+i)*4
                src = "0" if s == 0 else f"v[{c}:{c+3}]"
                r.append(f"v_mfma_f32_16x16x32_bf16 v[{c}:{c+3}], v[{fs+4*n}:{fs+4*n+3}], v[{fs+12+4*i}:{fs+15+4*i}], {src}")
            c = CS + 4*n
            src = "0" if s == 0 else f"v[{c}:{c+3}]"
            r.append(f"v_mfma_f32_16x16x32_bf16 v[{c}:{c+3}], v[{fs+4*n}:{fs+4*n+3}], v[{ONES}:{ONES+3}], {src}")
        return r
    a(f"""s_cmp_eq_u32 s{W}, 0
    s_cselect_b32 s40, 0, 0x7ff00000
    v_lshl_add_u32 v{T2}, v0, 8, s40
    v_mov_b32 v{T1}, s40
    v_lshlrev_b32 v{T0}, 3, v{VQ}
    s_lshl_b32 s77, s{RB}, 9
    s_add_u32 s77, s77, {hx(STATS)}""")
    def poll0(*args, **kw):
        if not o.wait: return
        SK = a.lab("nw")
        a(f"s_cmp_lg_u32 s{W}, 0\ns_cbranch_scc1 {SK}")
        poll(a, o, *args, **kw)
        a(f"{SK}:")
    xdone = 1 if o.depth >= 3 else 0
    B1F = 72
    VH = 84
    for s in range(21):
        fill = []
        if s < 20:
            if o.wait and s == o.pre_at:
                poll0(VPOLL, T1, 28, 0, 1, "1", first_issued=True, name="RDY")
                a(f"s_mov_b64 exec, 0xffff\nbuffer_load_dword v{VPOLL}, v{T2}, s[12:15], 0 offen sc1\ns_mov_b64 exec, -1"); vm.add("poll")
            if o.wait and s == o.pre_chk:
                poll0(VPOLL, T2, 12, 0, 16, "0xffff", first_issued=True, name="PRE")
            n = vm.cnt(f"w{s}", f"x{s>>1}")
            a(f"s_waitcnt vmcnt({n}) lgkmcnt(0)\ns_barrier")
            if s == 0: stamp(a, o, 2)
            dm = []
            if s % 2 == 0 and s//2 + 1 > xdone and s//2 + 1 < 10: dm += dma_x(s//2 + 1); xdone = s//2 + 1
            if s + o.depth < 20: dm += dma_w(s + o.depth)
            if o.wait and s == o.ready_at:
                dm.append((f"buffer_load_dword v{VPOLL}, v{T1}, s[28:31], 0 offen sc1", "poll"))
            if s == max(o.pre_chk, 17):
                for i in range(4): dm.append((f"buffer_load_dwordx2 v[{ST+2*i}:{ST+2*i+1}], v{T0}, s[12:15], s77 offen offset:{128*i} sc1", "st"))
            if s >= max(o.pre_chk, 20 - o.depth):
                for _ in range(3): dm.append((pf_reg.pop(0), "w2"))
            rd = [rd_text(x) for x in reads(s)]
            while dm or rd:
                if dm: fill.append(dm.pop(0))
                if rd: fill.append((rd.pop(0), None))
                if rd and not dm: fill.append((rd.pop(0), None))
        else:
            a("s_waitcnt lgkmcnt(0)\ns_barrier")
            st = []
            for n in range(3):
                for h in range(2):
                    st.append(f"v_lshlrev_b32 v{B1F+4*n+2*h}, 16, v{B1R+2*n+h}\nv_and_b32 v{B1F+4*n+2*h+1}, 0xffff0000, v{B1R+2*n+h}")
            st.append(f"v_and_b32 v{T0}, 1, v{VG}\nv_lshrrev_b32 v{T1}, 1, v{VG}")
            st.append(f"v_lshlrev_b32 v{T1}, 8, v{T1}\nv_lshl_add_u32 v{T1}, v{VQ}, 4, v{T1}")
            st.append(f"v_lshl_add_u32 v{VH}, v{T0}, 10, v{T1}\ns_mul_i32 s40, s{CB}, 12\ns_mul_i32 s41, s{W}, 3\ns_add_u32 s40, s40, s41")
            for n in range(3):
                st.append(f"s_add_u32 s41, s40, {n}\ns_lshr_b32 s44, s41, 1\ns_lshl_b32 s44, s44, 12\ns_and_b32 s41, s41, 1\ns_lshl_b32 s41, s41, 9\ns_add_u32 s44, s44, s41\ns_add_u32 s{45+n}, s44, s43")
            c1 = -2*math.sqrt(2/math.pi)*math.log2(math.e); c2 = c1*0.044715
            st.append(f"s_mov_b32 s40, {hx(fbits(c2))}\nv_mov_b32 v{VH+1}, {hx(fbits(c1))}")
            fill = [(t, None) for t in st]
        mf = mfmas(s-1) if s >= 1 else []
        k = 0
        per = max(1, -(-len(fill)//max(1, len(mf)))) if mf else len(fill)
        for m in mf:
            a(m)
            for _ in range(per):
                if k < len(fill):
                    t, tag = fill[k]; k += 1
                    a(t)
                    if tag: vm.add(tag)
        while k < len(fill):
            t, tag = fill[k]; k += 1
            a(t)
            if tag: vm.add(tag)
    stamp(a, o, 3)
    pf = pf_reg + pf_lds
    TP = 64
    OUT = [88, 92]
    npair = 0
    for n in range(3):
        for q in range(2):
            ob = OUT[(n*2+q) & 1]
            for il in range(2):
                i = 2*q + il
                c = ACC + (n*4+i)*4
                for e in range(4): a(f"v_fma_f32 v{TP+e}, v{CS+4*n+e}, v{ST+2*i+1}, v{B1F+4*n+e}")
                for e in range(4): a(f"v_fmac_f32 v{TP+e}, v{c+e}, v{ST+2*i}")
                for e in range(4): a(f"v_mul_f32 v{TP+4+e}, v{TP+e}, v{TP+e}")
                for e in range(4): a(f"v_fma_f32 v{TP+4+e}, v{TP+4+e}, s40, v{VH+1}")
                if pf: a(pf.pop(0)); vm.add("w2")
                for e in range(4): a(f"v_mul_f32 v{TP+4+e}, v{TP+4+e}, v{TP+e}")
                for e in range(4): a(f"v_exp_f32 v{TP+4+e}, v{TP+4+e}")
                for e in range(4): a(f"v_add_f32 v{TP+4+e}, 1.0, v{TP+4+e}")
                for e in range(4): a(f"v_rcp_f32 v{TP+4+e}, v{TP+4+e}")
                if pf: a(pf.pop(0)); vm.add("w2")
                npair += 1
                for e in range(4): a(f"v_mul_f32 v{TP+e}, v{TP+e}, v{TP+4+e}")
                for h in range(2): a(f"v_cvt_pk_bf16_f32 v{ob+2*il+h}, v{TP+2*h}, v{TP+2*h+1}")
            a(f"v_permlane16_swap_b32 v{ob}, v{ob+2}\nv_permlane16_swap_b32 v{ob+1}, v{ob+3}")
            a(f"buffer_store_dwordx4 v[{ob}:{ob+3}], v{VH}, s[12:15], s{45+n} offen offset:{2048*q} sc1"); vm.add("h")
    stamp(a, o, 4)
    A2 = 0 + 4
    HB = [84, 100, 228]
    B2R = 116
    VHO = 244
    a(f"s_mul_i32 s40, s{CB}, 160\nv_lshlrev_b32 v{T0}, 3, v{VG}")
    for dt in range(5):
        a(f"buffer_load_dwordx2 v[{B2R+2*dt}:{B2R+2*dt+1}], v{T0}, s[24:27], s40 offen offset:{32*dt}"); vm.add("b2")
    n1 = min(len(pf), 10)
    for _ in range(n1): a(pf.pop(0)); vm.add("w2")
    for i in range(4):
        a(f"s_xor_b32 s40, s{W}, {i}\ns_lshl_b32 s40, s40, 10\nv_add_u32 v{VHO+i}, s40, v{VL16}")
    a(f"s_waitcnt vmcnt({vm.cnt('h')})\ns_barrier")
    stamp(a, o, 5)
    a(f"""s_lshl_b32 s44, s{RB}, 8
    s_add_u32 s44, s44, {hx(FL_H)}""")
    if o.wait:
        SK = a.lab("hs")
        a(f"""s_cmp_lg_u32 s{W}, 0
        s_cbranch_scc1 {SK}
        s_lshl2_add_u32 s45, s{CB}, s44
        v_mov_b32 v{T0}, 1
        s_mov_b64 exec, 1
        buffer_store_dword v{T0}, off, s[12:15], s45 sc1
        s_mov_b64 exec, -1
        {SK}:""")
    while pf: a(pf.pop(0)); vm.add("w2")
    for dt in range(5):
        for h in range(2):
            a(f"v_lshlrev_b32 v{A2+4*dt+2*h}, 16, v{B2R+2*dt+h}\nv_and_b32 v{A2+4*dt+2*h+1}, 0xffff0000, v{B2R+2*dt+h}")
    a(f"v_lshlrev_b32 v{T1}, 2, v0")
    poll0(VPOLL, T1, 12, "s44", 1, "0xff", name="HF")
    a("s_waitcnt vmcnt(0)\ns_barrier")
    stamp(a, o, 6)
    def h_ld(i):
        b = HB[i % 3]
        return [f"buffer_load_dwordx4 v[{b+4*t}:{b+4*t+3}], v{VHO+t}, s[12:15], s{SH+i} offen sc1" for t in range(4)]
    for i in range(3):
        for t in h_ld(i): a(t)
    slot_of = {0:0, 1:1, 2:2, 3:3, 4:4, 5:3, 6:4, 7:3, 8:4, 9:0, 10:1, 11:2}
    VLR, VL3 = 116, 117
    a(f"v_add_u32 v{VLR}, s72, v{VL16}\nv_add_u32 v{VL3}, s73, v{VL16}")
    VOX = 118
    VTR, VYD, VYR, VTW = 121, 124, 125, 126
    a(f"""s_lshl_b32 s40, s{RB}, 6
    s_lshl4_add_u32 s40, s{W}, s40
    s_mul_i32 s40, s40, 1280
    s_mul_i32 s41, s{CB}, 160
    s_add_u32 s40, s40, s41""")
    for q in range(3):
        a(f"""v_add_u32 v{T0}, {64*q}, v0
        v_mul_u32_u24 v{T1}, 6554, v{T0}
        v_lshrrev_b32 v{T1}, 16, v{T1}
        v_mul_u32_u24 v{T2}, 10, v{T1}
        v_sub_u32 v{T0}, v{T0}, v{T2}
        v_mul_u32_u24 v{T2}, 1280, v{T1}
        v_lshl_add_u32 v{T2}, v{T0}, 4, v{T2}
        v_add_u32 v{VOX+q}, s40, v{T2}
        v_mul_u32_u24 v{T2}, 336, v{T1}
        v_lshl_add_u32 v{T2}, v{T0}, 5, v{T2}
        v_add_u32 v{VTR+q}, s72, v{T2}""")
    a(f"""v_cmp_gt_u32 vcc, 32, v0
    v_mov_b32 v{T0}, 0x7ff00000
    v_cndmask_b32 v{VOX+2}, v{T0}, v{VOX+2}, vcc
    v_mul_u32_u24 v{T0}, 336, v{VQ}
    v_lshl_add_u32 v{T0}, v{VG}, 4, v{T0}
    v_add_u32 v{VTW}, s72, v{T0}""")
    a(f"""v_sub_u32 v{T0}, v{VQ}, v{VG}
    v_and_b32 v{T0}, 7, v{T0}
    v_lshlrev_b32 v{T0}, 4, v{T0}
    v_lshl_add_u32 v{VYD}, v{VG}, 12, v{T0}
    s_mul_i32 s40, s{CB}, 80
    s_mul_i32 s41, s{W}, 20
    s_add_u32 s40, s40, s41
    s_lshl_b32 s40, s40, 12
    s_lshl_b32 s41, s{RB}, 7
    s_add_u32 s40, s40, s41
    s_add_u32 s47, s40, {hx(YT)}""")
    a(f"""v_lshrrev_b32 v{T0}, 2, v{VQ}
    v_and_b32 v{T1}, 2, v0
    v_lshl_add_u32 v{T1}, v{T1}, 1, v{T0}
    v_add_u32 v{T1}, s{W}, v{T1}
    v_and_b32 v{T1}, 7, v{T1}
    v_and_b32 v{T2}, 1, v{VG}
    v_lshl_or_b32 v{T1}, v{T2}, 3, v{T1}
    v_lshl_add_u32 v{T0}, v{VG}, 2, v{T0}
    v_lshlrev_b32 v{T0}, 8, v{T0}
    v_lshl_add_u32 v{T0}, v{T1}, 4, v{T0}
    v_and_b32 v{T1}, 1, v0
    v_lshl_add_u32 v{T0}, v{T1}, 3, v{T0}
    v_add_u32 v{VYR}, 61440, v{T0}
    s_lshl_b32 s46, s{CB}, 8
    s_add_u32 s46, s46, {hx(FL_Y)}
    v_mov_b32 v{T1}, 0""")
    XR = WREG + 60
    Y_AT, Y_CHK = 6, 9
    for i in range(12):
        wb = WREG + slot_of[i]*20; hb = HB[i % 3]
        post = []
        if i >= 1:
            j = i - 1
            if j + 3 < 12: post += h_ld(j + 3)
            if j <= 2: post += w2_reg(9 + j, j)
            if 3 <= j <= 6:
                sl = j - 3; d = WREG + slot_of[j+2]*20
                vb, off = (VLR, sl*5120) if sl < 3 else (VL3, 0)
                post += [f"ds_read_b128 v[{d+4*dt}:{d+4*dt+3}], v{vb} offset:{off+dt*1024}" for dt in range(5)]
            if j == 7:
                post += [f"buffer_load_dwordx4 v[{XR+4*q}:{XR+4*q+3}], v{VOX+q}, s[4:7], 0 offen" for q in range(3)]
        if o.wait and i == Y_AT: post.append(f"buffer_load_dword v{VPOLL}, v{T1}, s[12:15], s46 offen sc1")
        if i == Y_CHK:
            poll(a, o, VPOLL, T1, 12, "s46", 20, "1", first_issued=True, name="YF")
            for m in range(5):
                post.append(f"s_add_u32 m0, s73, {m*1024}\ns_add_u32 s40, s47, {m*16384}\nbuffer_load_dwordx4 v{VYD}, s[12:15], s40 offen sc1 lds")
        k = 0
        for t in range(4):
            for dt in range(5):
                c = A2 + (t*5+dt)*4
                src = "0" if (i == 0 and t > 0) else f"v[{c}:{c+3}]"
                a(f"v_mfma_f32_16x16x32_bf16 v[{c}:{c+3}], v[{wb+4*dt}:{wb+4*dt+3}], v[{hb+4*t}:{hb+4*t+3}], {src}")
                if k < len(post): a(post[k]); k += 1
        assert k == len(post)
    stamp(a, o, 7)
    for t in range(1, 4):
        for dt in range(5):
            c = A2 + (t*5+dt)*4
            a(f"ds_write_b128 v{VLR}, v[{c}:{c+3}] offset:{(t-1)*5120 + dt*1024}")
    for t in range(1, 4):
        a(f"s_xor_b32 s40, s{W}, {t}\ns_mul_i32 s40, s40, 15360\nv_add_u32 v{HB[0]+t}, s40, v{VL16}")
    a("s_waitcnt vmcnt(0) lgkmcnt(0)\ns_barrier")
    YR = HB[1]
    for dt in range(5):
        a(f"ds_read_b64_tr_b16 v[{YR+2*dt}:{YR+2*dt+1}], v{VYR} offset:{dt*4096}")
    for t in range(1, 4):
        for dt in range(5):
            c = A2 + (t*5+dt)*4
            a(f"ds_read_b128 v[{c}:{c+3}], v{HB[0]+t} offset:{(t-1)*5120 + dt*1024}")
    U = HB[2]
    for dt in range(5):
        c = A2 + dt*4
        for h in range(2):
            a(f"v_lshlrev_b32 v{U+2*h}, 16, v{YR+2*dt+h}\nv_and_b32 v{U+2*h+1}, 0xffff0000, v{YR+2*dt+h}")
        for h in range(2):
            a(f"v_pk_add_f32 v[{c+2*h}:{c+2*h+1}], v[{c+2*h}:{c+2*h+1}], v[{U+2*h}:{U+2*h+1}]")
    for t in range(1, 4):
        for dt in range(5):
            c = A2 + dt*4; s_ = A2 + (t*5+dt)*4
            for h in range(2):
                a(f"v_pk_add_f32 v[{c+2*h}:{c+2*h+1}], v[{c+2*h}:{c+2*h+1}], v[{s_+2*h}:{s_+2*h+1}]")
    a("s_waitcnt lgkmcnt(0)\ns_barrier")
    for dt in range(5):
        c = A2 + dt*4
        a(f"ds_write_b128 v{VTW}, v[{c}:{c+3}] offset:{dt*64}")
    R = A2 + 20
    for q in range(3):
        for h in range(2):
            a(f"ds_read_b128 v[{R+8*q+4*h}:{R+8*q+4*h+3}], v{VTR+q} offset:{16*h}")
    for q in range(3):
        for e in range(4):
            x = XR + 4*q + e; r = R + 8*q + 2*e
            a(f"v_lshlrev_b32 v{U}, 16, v{x}\nv_and_b32 v{U+1}, 0xffff0000, v{x}\nv_pk_add_f32 v[{r}:{r+1}], v[{r}:{r+1}], v[{U}:{U+1}]\nv_cvt_pk_bf16_f32 v{x}, v{r}, v{r+1}")
        a(f"buffer_store_dwordx4 v[{XR+4*q}:{XR+4*q+3}], v{VOX+q}, s[16:19], 0 offen {o.out_flags}")
    if o.prof:
        stamp(a, o, 8)
        a("s_waitcnt vmcnt(0)")
        stamp(a, o, 9)
        stamp_flush(a, o, 10, W, T0)
    a("s_endpgm")

def role_ssm(a, o):
    W, J = 3, 48
    KG = 15232
    UB = 4*KG
    UP = 4576
    LNI, W2T = UB, UB + 10752
    a("role_s:")
    if o.only == "g": a("s_cmp_ge_u32 s2, 0\ns_cbranch_scc1 k_end")
    stamp(a, o, 0)
    a("""s_load_dwordx2 s[4:5], s[0:1], 0
    s_load_dwordx2 s[8:9], s[0:1], 96
    s_load_dwordx2 s[12:13], s[0:1], 128
    s_load_dwordx2 s[28:29], s[0:1], 120
    s_load_dwordx16 s[32:47], s[0:1], 8""")
    if o.prio_s: a(f"s_setprio {o.prio_s}")
    if o.code_pf: code_prefetch(a, o, 2, 3, "role_s", o.s_bytes)
    a(f"""v_lshrrev_b32 v1, 6, v0
    v_and_b32 v0, 63, v0
    v_readfirstlane_b32 s{W}, v1
    s_mov_b32 s{J}, s2""")
    srd_tail(a, 4, T*D*2); srd_tail(a, 8, F*D*2); srd_tail(a, 12, WS_END); srd_tail(a, 28, 256)
    VG, VQ, VI, VHI = 250, 251, 248, 249
    T0, T1, T2, VPOLL = 252, 253, 254, 255
    a(f"v_lshrrev_b32 v{VG}, 4, v0\nv_and_b32 v{VQ}, 15, v0\nv_and_b32 v{VI}, 31, v0\nv_lshrrev_b32 v{VHI}, 5, v0")
    if o.wait:
        SK = a.lab("ini")
        a(f"""s_lshl2_add_u32 s50, s{J}, s{W}
        s_cmp_lg_u32 s50, 1023
        s_cbranch_scc1 {SK}
        v_mov_b32 v4, 0
        v_mov_b32 v5, 0
        v_mov_b32 v6, 0
        v_mov_b32 v7, 0
        v_lshlrev_b32 v{T0}, 8, v0
        buffer_store_dwordx4 v[4:7], v{T0}, s[12:15], 0 offen sc1
        buffer_store_dwordx4 v[4:7], v{T0}, s[12:15], 0 offen offset:16 sc1
        v_mov_b32 v8, 1
        s_waitcnt vmcnt(0)
        s_mov_b64 exec, 1
        buffer_store_dword v8, off, s[28:31], 0 sc1
        s_mov_b64 exec, -1
        {SK}:""")
    TB = 49
    XR = 4
    a(f"""s_and_b32 s{TB}, s{J}, 7
    s_lshl_b32 s{TB}, s{TB}, 5
    s_lshr_b32 s50, s{J}, 3
    s_add_u32 s{TB}, s{TB}, s50
    s_lshl_b32 s50, s{TB}, 2
    s_add_u32 s50, s50, s{W}
    s_mul_i32 s50, s50, 2560
    v_mul_u32_u24 v{T0}, 1280, v{VHI}
    v_lshl_add_u32 v{T0}, v{VI}, 3, v{T0}""")
    for c in range(5):
        a(f"buffer_load_dwordx2 v[{XR+2*c}:{XR+2*c+1}], v{T0}, s[4:7], s50 offen offset:{256*c}")
    KS, DB = 51, 52
    a(f"""s_mul_i32 s{KS}, s{J}, 205
    s_lshr_b32 s{KS}, s{KS}, 10
    s_mul_i32 s50, s{KS}, 5
    s_sub_u32 s{DB}, s{J}, s50
    s_lshl2_add_u32 s50, s{KS}, s{W}
    s_mul_i32 s50, s50, {8*1280}
    s_lshl_b32 s53, s{DB}, 8
    s_add_u32 s50, s50, s53
    v_mul_u32_u24 v{T1}, 1280, v{VG}
    v_lshl_add_u32 v{T1}, v{VQ}, 4, v{T1}
    s_lshl_b32 s53, s{W}, 11
    s_add_u32 m0, s53, {W2T}
    buffer_load_dwordx4 v{T1}, s[8:11], s50 offen lds
    s_add_u32 s50, s50, {4*1280}
    s_add_u32 m0, s53, {W2T+1024}
    buffer_load_dwordx4 v{T1}, s[8:11], s50 offen lds""")
    CH = 54
    PAR = 228
    VDT, VDS = 246, 247
    a(f"""s_lshl2_add_u32 s{CH}, s{J}, s{W}
    s_min_u32 s{CH}, s{CH}, 639
    s_mul_i32 s50, s{CH}, 384
    v_lshl_add_u32 v{T2}, v0, 1, s50
    s_lshl_b32 s50, s{CH}, 1
    v_mov_b32 v{T1}, s50""")
    for i in range(18): a(f"v_mov_b32 v{PAR+i}, 0")
    a(f"s_cmp_lt_u32 s{J}, 160\ns_cselect_b64 exec, -1, 1")
    a(f"global_load_ushort v{VDT}, v{T1}, s[44:45]\nglobal_load_ushort v{VDS}, v{T1}, s[46:47]")
    for p in range(3):
        for k in range(6):
            a(f"global_load_short_d16_hi v{PAR+6*p+k}, v{T2}, s[{32+2*k}:{33+2*k}] offset:{128*p} {o.par_flags}")
    a("s_mov_b64 exec, -1")
    XF = 16
    SUM, SQ, S2, Q2 = 14, 15, 36, 37
    for k in range(10):
        a(f"v_lshlrev_b32 v{XF+2*k}, 16, v{XR+k}\nv_and_b32 v{XF+2*k+1}, 0xffff0000, v{XR+k}")
        if k == 0: a(f"v_add_f32 v{SUM}, v{XF}, v{XF+1}\nv_mul_f32 v{SQ}, v{XF}, v{XF}\nv_mul_f32 v{Q2}, v{XF+1}, v{XF+1}")
        else: a(f"v_add_f32 v{S2}, v{XF+2*k}, v{XF+2*k+1}\nv_fmac_f32 v{SQ}, v{XF+2*k}, v{XF+2*k}\nv_fmac_f32 v{Q2}, v{XF+2*k+1}, v{XF+2*k+1}\nv_add_f32 v{SUM}, v{SUM}, v{S2}")
    stamp(a, o, 1)
    a(f"v_add_f32 v{SQ}, v{SQ}, v{Q2}")
    for r in (8, 4, 2, 1):
        a(f"v_add_f32_dpp v{SUM}, v{SUM}, v{SUM} row_ror:{r} row_mask:0xf bank_mask:0xf\nv_add_f32_dpp v{SQ}, v{SQ}, v{SQ} row_ror:{r} row_mask:0xf bank_mask:0xf")
    a(f"""v_mov_b32 v{T0}, v{SUM}
    v_mov_b32 v{T1}, v{SQ}
    v_permlane16_swap_b32 v{SUM}, v{T0}
    v_permlane16_swap_b32 v{SQ}, v{T1}
    v_add_f32 v{SUM}, v{SUM}, v{T0}
    v_add_f32 v{SQ}, v{SQ}, v{T1}
    v_mul_f32 v{SUM}, {hx(fbits(1/640))}, v{SUM}
    v_mul_f32 v{SQ}, {hx(fbits(1/640))}, v{SQ}
    v_fma_f32 v{SQ}, -v{SUM}, v{SUM}, v{SQ}
    v_max_f32 v{SQ}, 0, v{SQ}
    v_mov_b32 v39, v{SUM}
    v_mov_b32 v38, v{SQ}""")
    bf16_round(a, SUM); bf16_round(a, SQ)
    a(f"v_add_f32 v{SQ}, {hx(fbits(1e-5))}, v{SQ}")
    bf16_round(a, SQ)
    a(f"v_sqrt_f32 v{SQ}, v{SQ}")
    for k in range(20): a(f"v_sub_f32 v{XF+k}, v{XF+k}, v{SUM}")
    bf16_round(a, SQ)
    a(f"v_rcp_f32 v{SQ}, v{SQ}")
    for k in range(10): a(f"v_cvt_pk_bf16_f32 v{XR+k}, v{XF+2*k}, v{XF+2*k+1}")
    for k in range(10):
        a(f"v_lshlrev_b32 v{XF+2*k}, 16, v{XR+k}\nv_and_b32 v{XF+2*k+1}, 0xffff0000, v{XR+k}")
    for k in range(20): a(f"v_mul_f32 v{XF+k}, v{XF+k}, v{SQ}")
    for k in range(10): a(f"v_cvt_pk_bf16_f32 v{XR+k}, v{XF+2*k}, v{XF+2*k+1}")
    a(f"""s_mul_i32 s50, s{W}, 2688
    s_add_u32 s50, s50, {LNI}
    v_mul_u32_u24 v{T0}, 1344, v{VHI}
    v_lshl_add_u32 v{T0}, v{VI}, 3, v{T0}
    v_add_u32 v{T0}, s50, v{T0}""")
    for c in range(5): a(f"ds_write_b64 v{T0}, v[{XR+2*c}:{XR+2*c+1}] offset:{256*c}")
    a(f"""v_lshrrev_b32 v{T0}, 2, v{VQ}
    v_and_b32 v{T1}, 3, v0
    v_lshlrev_b32 v{T1}, 3, v{T1}
    v_mul_u32_u24 v40, 1344, v{T0}
    v_lshl_add_u32 v40, v{VG}, 5, v40
    v_add_u32 v40, v40, v{T1}
    s_lshl_b32 s50, s{W}, 7
    s_add_u32 s50, s50, {LNI}
    v_add_u32 v40, s50, v40
    v_lshl_add_u32 v41, v{VG}, 3, v{T0}
    v_lshl_add_u32 v41, v41, 8, v{T1}
    s_lshl_b32 s50, s{W}, 6
    s_add_u32 s50, s50, {W2T}
    v_add_u32 v41, s50, v41
    v_lshrrev_b32 v42, 2, v0
    v_lshlrev_b32 v42, 14, v42
    v_lshl_add_u32 v42, v{T1}, 1, v42
    v_lshlrev_b32 v43, 4, v0""")
    a(f"v_mul_f32 v38, v38, v{SQ}\nv_mul_f32 v38, v38, v{SQ}")
    bf16_round(a, 38)
    a(f"v_add_f32 v38, {hx(fbits(1e-5))}, v38")
    bf16_round(a, 38)
    a("v_sqrt_f32 v38, v38")
    bf16_round(a, 38)
    a(f"""v_rcp_f32 v38, v38
    s_lshl_b32 s50, s{TB}, 6
    s_lshl4_add_u32 s50, s{W}, s50
    s_add_u32 s50, s50, {hx(STATS)}
    v_lshlrev_b32 v{T0}, 3, v{VHI}
    v_mul_f32 v38, v38, v{SQ}
    v_mul_f32_e64 v39, -v39, v38
    s_waitcnt vmcnt(20) lgkmcnt(0)
    s_barrier
    s_mov_b32 exec_lo, 1
    s_mov_b32 exec_hi, 1
    buffer_store_dwordx2 v[38:39], v{T0}, s[12:15], s50 offen sc1
    s_mov_b64 exec, -1""")
    for m in range(3):
        for h in range(2):
            a(f"ds_read_b64_tr_b16 v[{16+4*m+2*h}:{17+4*m+2*h}], v40 offset:{m*512 + h*4*1344}")
    for i in range(2):
        for h in range(2):
            a(f"ds_read_b64_tr_b16 v[{28+4*i+2*h}:{29+4*i+2*h}], v41 offset:{i*32 + h*1024}")
    a(f"""s_lshl_b32 s50, s{W}, 18
    s_lshl_b32 s53, s{TB}, 6
    s_add_u32 s50, s50, s53
    s_add_u32 s50, s50, {hx(XN)}
    buffer_store_dwordx4 v[16:19], v42, s[12:15], s50 offen sc1
    s_add_u32 s50, s50, {hx(4<<18)}
    buffer_store_dwordx4 v[20:23], v42, s[12:15], s50 offen sc1
    s_add_u32 s50, s50, {hx(4<<18)}
    s_cmp_ge_u32 s{W}, 2
    s_cselect_b32 s50, 0x7ff00000, s50
    buffer_store_dwordx4 v[24:27], v42, s[12:15], s50 offen sc1""")
    for i in range(2):
        a(f"""s_lshl_b32 s50, s{DB}, 3
        s_lshl1_add_u32 s50, s{W}, s50
        s_add_u32 s50, s50, {i}
        s_mul_i32 s53, s50, 205
        s_lshr_b32 s53, s53, 10
        s_mul_i32 s55, s53, {48*5 - 5}
        s_add_u32 s50, s50, s55
        s_mul_i32 s55, s{KS}, 5
        s_add_u32 s50, s50, s55
        s_lshl_b32 s50, s50, 10
        s_add_u32 s50, s50, {hx(W2F)}
        s_cmp_ge_u32 s{J}, 240
        s_cselect_b32 s50, 0x7ff00000, s50
        buffer_store_dwordx4 v[{28+4*i}:{31+4*i}], v43, s[12:15], s50 offen sc1""")
    if o.wait:
        a(f"s_cmp_eq_u32 s{W}, 0\ns_cselect_b32 s50, 0, 0x7ff00000\nbuffer_load_dword v{VPOLL}, off, s[28:31], s50 sc1")
    stamp(a, o, 2)
    def signal_pre():
        a("s_waitcnt vmcnt(0)\ns_barrier")
        if o.wait:
            SK = a.lab("sp")
            a(f"s_cmp_lg_u32 s{W}, 0\ns_cbranch_scc1 {SK}\nv_mov_b32 v{T1}, 0")
            poll(a, o, VPOLL, T1, 28, 0, 1, "1", first_issued=True, name="RDS")
            a(f"""s_and_b32 s50, s{J}, 15
            s_lshl_b32 s50, s50, 8
            v_mov_b32 v{T1}, 1
            s_mov_b64 exec, 1
            buffer_atomic_add v{T1}, off, s[12:15], s50 sc1
            s_mov_b64 exec, -1
            {SK}:""")
    a(f"s_cmp_lt_u32 s{J}, 160\ns_cbranch_scc1 s_ssm")
    signal_pre()
    if o.prof:
        stamp(a, o, 3)
        stamp_flush(a, o, 4, W, T0)
    a("s_endpgm\ns_ssm:")
    DA = 4
    FA, FB = 20, 52
    Z, CC, W1, W8, WW, W16 = 84, 86, 88, 90, 92, 94
    TMP = [96, 98]
    PK = [100, 101]
    VAL = 102
    DT2, DTC = 140, 142
    VWA, VRA, VRB = 144, 145, 146
    a(f"""v_lshlrev_b32 v{VDT}, 16, v{VDT}
    v_mul_f32 v{VDT}, {hx(fbits(math.log2(math.e)))}, v{VDT}
    v_exp_f32 v{VDT}, v{VDT}
    v_lshlrev_b32 v{VDS}, 16, v{VDS}""")
    bf16_round(a, VDT)
    a(f"""v_mul_f32 v{DT2}, {hx(fbits(math.log2(math.e)))}, v{VDT}
    v_mul_f32 v{DT2+1}, {hx(fbits(1/(2*math.pi)))}, v{VDT}
    s_mul_i32 s56, s{W}, {KG}
    v_lshl_add_u32 v{VWA}, v0, 2, s56
    v_mul_u32_u24 v{T0}, 272, v{VI}
    v_lshl_add_u32 v{T0}, v{VHI}, 4, v{T0}
    v_add_u32 v{VRB}, s56, v{T0}
    v_subrev_u32 v{T1}, 16, v{VI}
    v_cmp_lt_u32 vcc, 24, v{VI}
    v_cndmask_b32 v{T1}, v{VI}, v{T1}, vcc""")
    for ln, row in ((5, 4), (7, 12), (13, 12), (24, 13)):
        a(f"v_writelane_b32 v{T1}, {row}, {ln}\nv_writelane_b32 v{T1}, {row}, {ln+32}")
    a(f"""v_mul_u32_u24 v{T0}, 272, v{T1}
    v_lshl_add_u32 v{T0}, v{VHI}, 4, v{T0}
    v_add_u32 v{VRA}, s56, v{T0}
    v_mov_b32 v{T0}, 0x3f80
    ds_write_b32 v{VWA}, v{T0}
    s_mov_b32 s58, {hx(fbits(8.0))}
    s_mov_b32 s59, {hx(fbits(256.0))}
    s_mov_b32 s57, 0""")
    cp = lambda r: f"v[{r}:{r+1}]"
    def cmul1(d, p, w): return f"v_mul_f32 v{d}, v{p}, v{w}\nv_mul_f32 v{d+1}, v{p}, v{w+1}"
    def cmul2(d, p, w): return f"v_fma_f32 v{d}, -v{p+1}, v{w+1}, v{d}\nv_fma_f32 v{d+1}, v{p+1}, v{w}, v{d+1}"
    AROW = {0:0, 1:1, 2:2, 3:3, 4:8, 5:9, 6:10, 7:11, 256:4, 258:6, 260:12, 262:14, 512:16, 516:17, 1024:18, 1536:19,
            768:20, 772:21, 1280:22, 1792:23, 2048:13}
    def emit_val(reg, kind, idx, pk):
        if kind == "A": return [f"v_cvt_pk_bf16_f32 v{pk}, v{reg}, -v{reg+1}", f"ds_write_b32 v{VWA}, v{pk} offset:{(32+AROW[idx])*272}"]
        return [f"v_cvt_pk_bf16_f32 v{pk}, v{reg}, v{reg+1}", f"ds_write_b32 v{VWA}, v{pk} offset:{idx*272}"]
    a(".p2align 3\ns_kloop:")
    P = PAR
    a(f"""v_mul_f32 v{Z}, v{P}, v{DT2}
    v_mul_f32 v{Z+1}, v{P+1}, v{DT2+1}
    {cmul1(CC, P+2, P+4)}
    v_mul_f32 v{W8}, s58, v{Z}
    v_mul_f32 v{W8+1}, s58, v{Z+1}
    v_mul_f32 v{WW}, s59, v{Z}
    v_mul_f32 v{WW+1}, s59, v{Z+1}
    {cmul2(CC, P+2, P+4)}""")
    M = VAL
    for k, (src, dst) in enumerate(((Z, W1), (W8, W8), (WW, WW))):
        a(f"v_exp_f32 v{M+2*k}, v{src}\nv_fract_f32 v{M+2*k+1}, v{src+1}")
    a(f"v_mul_f32 v{CC}, v{CC}, v{VDT}\nv_mul_f32 v{CC+1}, v{CC+1}, v{VDT}")
    for k, dst in enumerate((W1, W8, WW)):
        a(f"v_cos_f32 v{dst}, v{M+2*k+1}\nv_sin_f32 v{dst+1}, v{M+2*k+1}")
    for i in range(12): a(f"v_mov_b32 v{P+i}, v{P+6+i}")
    for k, dst in enumerate((W1, W8, WW)):
        a(f"v_mul_f32 v{dst}, v{dst}, v{M+2*k}\nv_mul_f32 v{dst+1}, v{dst+1}, v{M+2*k}")
    for t in emit_val(CC, "A", 0, PK[0]) + emit_val(W8, "B", 1, PK[1]): a(t)
    tasks = []
    for e in range(1, 8): tasks.append((f"R{e}", f"R{e-1}", "W1", "A", e))
    for k in range(1, 9): tasks.append((f"G{k}", f"G{k-1}" if k > 1 else "R0", "WW", "A", 256*k))
    tasks += [("S258", "R2", "WW", "A", 258), ("S260", "R4", "WW", "A", 260), ("S262", "R6", "WW", "A", 262),
              ("S516", "S260", "WW", "A", 516), ("S772", "S516", "WW", "A", 772)]
    tasks.append(("E2", "E1", "E1", "B", 2))
    for j in range(3, 32): tasks.append((f"E{j}", f"E{j-2}", "E2", "B", j))
    order = []
    R = [t for t in tasks if t[0][0] == "R"]; G = [t for t in tasks if t[0][0] == "G"]; S_ = [t for t in tasks if t[0][0] == "S"]; E = [t for t in tasks if t[0][0] == "E"]
    for i in range(7): order.append((R[i], G[i]))
    order.append((G[7], E[0])); order.append((S_[0], S_[1])); order.append((S_[2], S_[3])); order.append((S_[4], E[1]))
    for i in range(2, 30, 2): order.append((E[i], E[i+1]))
    assert sum(len(x) for x in order) == 50
    loc = {"R0": CC, "E1": W8, "W1": W1, "WW": WW}
    lastuse = {}
    for pi, pr in enumerate(order):
        for t in pr: lastuse[t[1]] = pi; lastuse[t[2]] = pi
    free = list(range(VAL, VAL+38, 2))
    kmf = [f"v_mfma_f32_32x32x16_bf16 v[{DA}:{DA+15}], v[{FA+4*k}:{FA+4*k+3}], v[{FB+4*k}:{FB+4*k+3}], v[{DA}:{DA+15}]" for k in range(8)]
    mq = list(kmf)
    for pi, pr in enumerate(order):
        for t in pr: loc[t[0]] = free.pop(0)
        for s_, t in enumerate(pr): a(cmul1(loc[t[0]], loc[t[1]], loc[t[2]]))
        for s_, t in enumerate(pr): a(cmul2(loc[t[0]], loc[t[1]], loc[t[2]]))
        ev = [emit_val(loc[t[0]], t[3], t[4], PK[s_]) for s_, t in enumerate(pr)]
        a(ev[0][0]); a(ev[1][0]); a(ev[0][1]); a(ev[1][1])
        if mq and pi % 2 == 1: a(mq.pop(0))
        if pi == o.sig_pair:
            a("s_cmp_lg_u32 s57, 0\ns_cbranch_scc1 s_ksg")
            signal_pre()
            a("s_ksg:")
        for nm in list(loc):
            if loc[nm] >= VAL and lastuse.get(nm, -1) <= pi:
                free.append(loc.pop(nm))
    assert not mq
    for k in range(8):
        a(f"ds_read_b128 v[{FA+4*k}:{FA+4*k+3}], v{VRA} offset:{32*272 + 32*k}\nds_read_b128 v[{FB+4*k}:{FB+4*k+3}], v{VRB} offset:{32*k}")
    a("s_cmp_lg_u32 s57, 0\ns_cbranch_scc1 s_knz")
    for i in range(16): a(f"v_mov_b32 v{DA+i}, 0")
    a("s_knz:\ns_add_u32 s57, s57, 1\ns_cmp_lt_u32 s57, 3\ns_cbranch_scc1 s_kloop")
    stamp(a, o, 3)
    UR = 160
    a(f"v_lshlrev_b32 v{T2}, 8, v0")
    if o.wait: a(f"s_cmp_eq_u32 s{W}, 0\ns_cselect_b32 s50, 0, 0x7ff00000\ns_mov_b64 exec, 0xffff\nbuffer_load_dword v{VPOLL}, v{T2}, s[12:15], s50 offen sc1\ns_mov_b64 exec, -1")
    for m in kmf: a(m)
    a(f"""s_lshl_b32 s50, s{J}, 14
    s_lshl_b32 s53, s{W}, 12
    s_add_u32 s50, s50, s53
    s_add_u32 s50, s50, {hx(XN)}
    v_lshlrev_b32 v{T0}, 4, v0""")
    if o.wait:
        a(f"s_cmp_lg_u32 s{W}, 0\ns_cbranch_scc1 s_prs")
        poll(a, o, VPOLL, T2, 12, 0, 16, "0xffff", first_issued=True, name="PRS")
        a("s_prs:\ns_barrier")
    for m in range(4):
        a(f"buffer_load_dwordx4 v[{UR+4*m}:{UR+4*m+3}], v{T0}, s[12:15], s50 offen offset:{1024*m} sc1")
    stamp(a, o, 4)
    Tt = [DA+i for i in range(8)]; Q0, Q1, P0, P1, P2 = DA+8, DA+9, DA+10, DA+11, DA+12
    T8, Q0n, P0n, P1n, M0_, M1_ = 84, 85, 86, 87, 88, 89
    dppm = "row_mask:0xf bank_mask:0xf"
    for dst, cur, nxt in ((T8, Tt[0], Q0), (Q0n, Q0, P0), (P0n, P0, P1), (P1n, P1, P2)):
        a(f"v_mov_b32_dpp v{dst}, v{nxt} wave_rol:1 {dppm}")
    for dst, cur, nxt in ((T8, Tt[0], Q0), (Q0n, Q0, P0), (P0n, P0, P1), (P1n, P1, P2)):
        a(f"v_mov_b32_dpp v{dst}, v{cur} wave_shl:1 {dppm}")
    a(f"""s_mov_b32 s60, 0
    s_mov_b32 s61, -1
    s_mov_b32 s62, 0xaaaaaaaa
    s_mov_b32 s63, 0xaaaaaaaa
    v_cndmask_b32 v{Tt[7]}, v{Tt[7]}, v{T8}, s[60:61]
    v_cndmask_b32 v{M0_}, v{P0}, v{P0n}, s[62:63]
    v_cndmask_b32 v{M1_}, v{P1}, v{P1n}, s[62:63]
    s_mov_b64 exec, 1
    v_add_f32 v{Tt[0]}, v{Tt[0]}, v{VDS}
    s_mov_b64 exec, -1
    v_sub_u32 v{T0}, 63, v0
    v_lshl_add_u32 v{T0}, v{T0}, 4, s56""")
    CB_ = 4160
    blocks = [(Tt + [T8], 3072), ([Q0]*3 + [Q1]*3 + [Q0n]*3, 2048), ([P0]*4 + [M0_] + [P0n]*4, 1024), ([P1]*4 + [M1_] + [P1n]*4, 0)]
    ob = 92
    for e, off in blocks:
        for cpy in range(2):
            for i in range(4):
                hi_l = 7 - 2*i + cpy
                a(f"v_cvt_pk_bf16_f32 v{ob+i}, v{e[hi_l]}, v{e[hi_l-1]}")
            a(f"ds_write_b128 v{T0}, v[{ob}:{ob+3}] offset:{off + cpy*CB_}")
            ob = 92 + (ob - 92 + 4) % 16
    a(f"""v_mov_b32 v108, 0
    v_mov_b32 v109, 0
    v_mov_b32 v110, 0
    v_mov_b32 v111, 0
    v_lshl_add_u32 v{T0}, v0, 4, s56
    s_mul_i32 s60, s{W}, {UP}
    s_add_u32 s60, s60, {UB}
    v_lshl_add_u32 v{T1}, v0, 4, s60
    s_mov_b64 exec, 0x3fffffff
    ds_write_b128 v{T1}, v[108:111]
    s_mov_b64 exec, 3
    ds_write_b128 v{T0}, v[108:111] offset:4096
    s_mov_b64 exec, 1
    v_cvt_pk_bf16_f32 v108, v{Tt[0]}, 0
    s_mov_b64 exec, 3
    ds_write_b128 v{T0}, v[108:111] offset:{4096+CB_}
    s_mov_b64 exec, -1""")
    a(f"""v_and_b32 v{T0}, 3, v0
    v_mul_u32_u24 v{T0}, {UP}, v{T0}
    v_lshrrev_b32 v{T1}, 2, v0
    v_lshl_add_u32 v{T0}, v{T1}, 4, v{T0}
    s_lshl_b32 s50, s{W}, 10
    s_add_u32 s50, s50, {UB + 480}
    v_add_u32 v{T0}, s50, v{T0}""")
    for m in range(4): a(f"ds_write_b128 v{T0}, v[{UR+4*m}:{UR+4*m+3}] offset:{256*m}")
    VA = 228
    VB = 232
    a(f"""v_lshlrev_b32 v{T0}, 3, v{VG}
    v_sub_u32 v{T0}, v{T0}, v{VQ}
    v_add_u32 v{T0}, {2048-16}, v{T0}
    v_lshrrev_b32 v{T0}, 1, v{T0}
    v_and_b32 v{T1}, 1, v0
    v_xor_b32 v{T1}, 1, v{T1}
    v_mul_u32_u24 v{T1}, {CB_}, v{T1}
    v_lshl_add_u32 v{T0}, v{T0}, 2, v{T1}
    v_add_u32 v{T0}, s56, v{T0}""")
    for cpair in range(4): a(f"v_subrev_u32 v{VA+cpair}, {512*(2*cpair+1)}, v{T0}")
    a(f"""v_lshlrev_b32 v{T0}, 5, v{VQ}
    v_lshl_add_u32 v{T0}, v{VG}, 4, v{T0}
    s_add_u32 s60, s60, {480-32}
    v_add_u32 v{VB}, s60, v{T0}""")
    AC = 4; SA = [36, 100]; SB = [68, 132]
    for i in range(32): a(f"v_mov_b32 v{AC+i}, 0")
    a("s_waitcnt lgkmcnt(0)\ns_barrier")
    stamp(a, o, 5)
    def crd(st):
        r = []
        for c in range(8):
            o0 = 0 if c & 1 else 128
            d = SA[st] + 4*c
            r.append(f"ds_read_b128 v[{SB[st]+4*c}:{SB[st]+4*c+3}], v{VB} offset:{512*c}")
            r.append(f"ds_read2_b32 v[{d}:{d+1}], v{VA+c//2} offset0:{o0} offset1:{o0+1}")
            r.append(f"ds_read2_b32 v[{d+2}:{d+3}], v{VA+c//2} offset0:{o0+2} offset1:{o0+3}")
        for i in range(5): r.append(f"v_subrev_u32_e64 v{VA+i}, 64, v{VA+i}")
        return r
    for t in crd(0): a(t)
    a("s_mov_b32 s57, 0\n.p2align 3\ns_cloop:")
    for st in range(2):
        a("s_waitcnt lgkmcnt(0)\ns_nop 0")
        rd = crd(st ^ 1)
        for c in range(8):
            for nu in range(8 - c):
                n = nu + c
                a(f"v_mfma_f32_16x16x32_bf16 v[{AC+4*n}:{AC+4*n+3}], v[{SA[st]+4*c}:{SA[st]+4*c+3}], v[{SB[st]+4*nu}:{SB[st]+4*nu+3}], v[{AC+4*n}:{AC+4*n+3}]")
                if rd: a(rd.pop(0))
        assert not rd
    a("s_add_u32 s57, s57, 1\ns_cmp_lt_u32 s57, 4\ns_cbranch_scc1 s_cloop")
    stamp(a, o, 6)
    a(f"""v_lshrrev_b32 v{T0}, 2, v{VQ}
    v_lshlrev_b32 v{T0}, 7, v{T0}
    v_and_b32 v{T1}, 3, v0
    v_lshl_add_u32 v{T0}, v{T1}, 4, v{T0}
    v_lshl_add_u32 v{T0}, v{VHI}, 6, v{T0}
    v_and_b32 v{T1}, 1, v{VG}
    v_lshl_add_u32 v{T0}, v{T1}, 9, v{T0}
    s_lshl_b32 s50, s{CH}, 12
    s_add_u32 s50, s50, {hx(YT)}
    s_waitcnt lgkmcnt(0)""")
    for m in range(4):
        ob = 36 + 4*m
        for i in range(4): a(f"v_cvt_pk_bf16_f32 v{ob+i}, v{AC+8*m+2*i}, v{AC+8*m+2*i+1}")
        a(f"v_permlane16_swap_b32 v{ob}, v{ob+2}\nv_permlane16_swap_b32 v{ob+1}, v{ob+3}")
        a(f"buffer_store_dwordx4 v[{ob}:{ob+3}], v{T0}, s[12:15], s50 offen offset:{1024*m} sc1")
    if o.wait:
        SK = a.lab("ys")
        a(f"""s_waitcnt vmcnt(0)
        s_barrier
        s_cmp_lg_u32 s{W}, 0
        s_cbranch_scc1 {SK}
        s_mul_i32 s50, s{J}, 205
        s_lshr_b32 s50, s50, 12
        s_lshl_b32 s50, s50, 8
        s_add_u32 s50, s50, {hx(FL_Y)}
        v_mov_b32 v{T1}, 1
        s_mov_b64 exec, 1
        buffer_atomic_add v{T1}, off, s[12:15], s50 sc1
        s_mov_b64 exec, -1
        {SK}:""")
    if o.prof:
        stamp(a, o, 7)
        stamp_flush(a, o, 8, W, T0)
    a("s_endpgm")

HEADER = open("cdna_kernels/" + NAME + ".s.ref").read().split("; Override launch")[0]

def build(o):
    o.g_bytes = getattr(o, "g_bytes", 16384); o.s_bytes = getattr(o, "s_bytes", 8192)
    a = Asm()
    k = NAME + "_kernel"
    a(f"{k}:")
    a("s_cmp_ge_u32 s2, 256\ns_cbranch_scc1 role_g")
    role_ssm(a, o)
    a(".p2align 6")
    role_gemm(a, o)
    a("k_end:\ns_endpgm")
    body = a.finish([k], verbose=True)
    return f"""{HEADER}; @launch grid=(512,1,1) block=(256,1,1) lds={LDS_BYTES}
.amdgcn_target "amdgcn-amd-amdhsa--gfx950"
.text
.globl {k}
.p2align 8
.type {k},@function
{body}
.section .rodata,"a"
.p2align 6
.amdhsa_kernel {k}
  .amdhsa_next_free_vgpr 256
  .amdhsa_next_free_sgpr 102
  .amdhsa_accum_offset 256
  .amdhsa_group_segment_fixed_size 0
  .amdhsa_kernarg_size 136
  .amdhsa_user_sgpr_count 2
  .amdhsa_user_sgpr_kernarg_segment_ptr 1
  .amdhsa_system_sgpr_workgroup_id_x 1
.end_amdhsa_kernel
"""

if __name__ == "__main__":
    o = Opt()
    out = sys.argv[1]
    for kv in sys.argv[2:]:
        k, v = kv.split("=")
        cur = getattr(o, k, None)
        setattr(o, k, v if isinstance(cur, str) else (bool(int(v)) if isinstance(cur, bool) else int(v)))
    open(out, "w").write(build(o))
```

```python
import sys, math, struct
from asmlib import Asm

NAME = "parallel_sum__ssm_conv_s4__mixer_channel_mlp__prompt"
T, D, F, NM = 2048, 640, 1536, 192
FL_PRE, FL_Y, STATS = 0x0, 0x1000, 0x8000
FL_H, FL_YP = 0xD40000, 0xD60000
XN, YT, W2F, HH, PROFO, WS_END = 0x10000, 0x290000, 0x510000, 0x700000, 0xD00000, 0xD80000
OOB = "0x7ff00000"
KG = 15232
KE, UB, UP = 4096, 4*4096, 4576
CPB, D3O, D2O = 1216, 2368, 2688
SLA = UB + 4*UP
CNT = 75648
CNT0 = 61440
RING = 77824
WBASE = 65536
WSL = [WBASE + ((i - 2) % 6)*12288 for i in range(6)]
XSL = [WBASE + 73728 + i*8192 for i in range(3)]
PARB, LNI = 20480, 30720
REG = 21504
LDS_BYTES = 163840

def fbits(x): return struct.unpack("<I", struct.pack("<f", x))[0]
def hx(x): return f"0x{x & 0xffffffff:x}"

class Opt:
    wait = True; prof = 0; spin = 200000; sleep = 4
    ra = 5; rb = 5; rc = 1; rm = 10; rk = 1
    rot2 = 1
    n0 = 3; na = 4; npro = 24; cap = 4; npre = 0; kpk = True; sig_at = 2
    pre_at = 10; pre_chk = 14; tw_at = 17; hlead = 8; prio_tab = 3
    ysleep = 8; hsleep = 2; lsleep = 1
    g1p = 0; x_nocs = False; h_flags = "sc1"
    n2 = 10; hrot = 0; htouch = False; hsync = False
    g1_ld = 2; gelu_ld = 2; n1 = 5; gelu_pk = 0
    code_pf = True; code_bytes = 16384
    out_flags = ""; par_flags = ""
    prio_c = 0; prio_h = 0; prio_conv = 3; prio_g2 = 0; prio_fin = 0

class VM:
    def __init__(self): self.l = []
    def add(self, tag, n=1): self.l += [tag]*n
    def has(self, *tags): return any(t in tags for t in self.l)
    def cnt(self, *tags):
        last = max(i for i, t in enumerate(self.l) if t in tags)
        return len(self.l) - 1 - last

W, RB, CB, RBL, CBL, KX, KW, XB, WB, CH, KGB, UBW, TB = 3, 48, 49, 50, 51, 52, 53, 54, 55, 56, 57, 58, 59
HO, WO, WGR, HGR = 32, 36, 40, 44
VXO, VWO = 1, 3
VG, VQ, T0, T1, T2, VPOLL = 250, 251, 252, 253, 254, 255
VL16, VL16B = 248, 249

def stamp(a, o, idx, base=80, g1=0):
    if o.prof and (o.g1p == g1 or idx == 0):
        a(f"{'s_memrealtime' if o.prof == 1 else 's_memtime'} s[{base+2*idx}:{base+2*idx+1}]")

def stamp_flush(a, o, n, woff, vt, base=80):
    if not o.prof: return
    a("s_waitcnt lgkmcnt(0)")
    a(f"s_lshl_b32 s78, s2, 3\ns_add_u32 s78, s78, s{W}\ns_add_u32 s78, s78, {woff}\ns_lshl_b32 s78, s78, 6\ns_add_u32 s78, s78, {hx(PROFO)}")
    for i in range(n):
        a(f"v_mov_b32 v{vt}, s{base+2*i}\nbuffer_store_dword v{vt}, off, s[12:15], s78 offset:{4*i}")

def spoll(a, o, loads, check, name, sleep, pre=False):
    if not o.wait: return
    L = a.lab(name); X = a.lab(name + "x")
    a(f"s_mov_b32 s76, 0\ns_branch {L}f\n{L}:")
    if sleep: a(f"s_sleep {sleep}")
    a(f"s_add_u32 s76, s76, 1\ns_cmp_gt_u32 s76, {o.spin}\ns_cbranch_scc1 {X}")
    if not pre: a(f"{L}f:")
    a(loads)
    if pre: a(f"{L}f:")
    a("s_waitcnt lgkmcnt(0)"); a(check)
    a(f"s_cbranch_scc0 {L}\n{X}:")

def poll(a, o, vdst, voff, srd, soff, expect, mask, name="P"):
    if not o.wait: return
    L = a.lab(name); X = a.lab(name + "x"); C = a.lab(name + "c")
    a(f"s_mov_b64 exec, {mask}\ns_mov_b32 s76, 0\ns_branch {C}\n{L}:\ns_sleep {o.sleep}")
    ad = f"v{voff}, s[{srd}:{srd+3}], {soff} offen" if voff is not None else f"off, s[{srd}:{srd+3}], {soff}"
    a(f"buffer_load_dword v{vdst}, {ad} sc1\ns_waitcnt vmcnt(0)\n{C}:")
    a(f"v_cmp_ne_u32 vcc, {expect}, v{vdst}")
    a(f"s_add_u32 s76, s76, 1\ns_cmp_gt_u32 s76, {o.spin}\ns_cbranch_scc1 {X}")
    a(f"s_cbranch_vccnz {L}\n{X}:\ns_mov_b64 exec, -1")

def only_w0(a, fn):
    SK = a.lab("w0")
    a(f"s_cmp_lg_u32 s{W}, 0\ns_cbranch_scc1 {SK}")
    fn()
    a(f"{SK}:")

def add_one(a, sreg, vt):
    a(f"v_mov_b32 v{vt}, 1\ns_mov_b64 exec, 1\nbuffer_atomic_add v{vt}, off, s[12:15], s{sreg} sc1\ns_mov_b64 exec, -1")

def lds_arrive(a, cnt, va, vone, rtn=None):
    a("s_mov_b64 exec, 1")
    if rtn is not None: a(f"ds_add_rtn_u32 v{rtn}, v{va}, v{vone} offset:{4*cnt}\ns_waitcnt lgkmcnt(0)\nv_readfirstlane_b32 s60, v{rtn}\ns_mov_b64 exec, -1\ns_cmp_eq_u32 s60, 3")
    else: a(f"ds_add_u32 v{va}, v{vone} offset:{4*cnt}\ns_mov_b64 exec, -1")

def lds_wait4(a, o, cnt, va, vb):
    L = a.lab("lw"); X = a.lab("lx")
    a(f"""s_mov_b32 s76, 0
    s_branch {L}f
    {L}:
    s_sleep {o.lsleep}
    s_add_u32 s76, s76, 1
    s_cmp_gt_u32 s76, {o.spin*8}
    s_cbranch_scc1 {X}
    {L}f:
    ds_read_b32 v{vb}, v{va} offset:{4*cnt}
    s_waitcnt lgkmcnt(0)
    v_readfirstlane_b32 s60, v{vb}
    s_cmp_lt_u32 s60, 4
    s_cbranch_scc1 {L}
    {X}:""")

def weave(a, vm, mf, spread, early, cap=2):
    n = len(mf)
    if not n:
        for t, tag in spread + early:
            a(t)
            if tag and vm: vm.add(tag)
        return
    slots = [[] for _ in range(n)]
    for i, it in enumerate(spread): slots[min(n - 1, 2 + (i*(n-2))//len(spread))].append(it)
    k = 0
    cnt = lambda sl: sum(len(t.split("\n")) for t, _ in sl)
    for it in early:
        while k < n - 1 and cnt(slots[k]) >= cap: k += 1
        slots[k].append(it)
    for i in range(n):
        a(mf[i])
        for t, tag in slots[i]:
            a(t)
            if tag and vm: vm.add(tag)

def dma_x(j):
    g = []
    for n in range(2):
        t = f"s_add_u32 m0, s{XB}, {XSL[j%3] + n*1024}\nbuffer_load_dwordx4 v{VXO+n}, s[4:7], s{KX} offen lds"
        if n == 1: t += f"\ns_add_u32 s{KX}, s{KX}, 128\ns_cmp_eq_u32 s{KX}, 1280\ns_cselect_b32 s{KX}, 0, s{KX}"
        g.append((t, f"x{j}"))
    return g
def dma_w(s):
    g = []
    for n in range(3):
        t = f"s_add_u32 m0, s{WB}, {WSL[s%6] + n*(1024-128)}\nbuffer_load_dwordx4 v{VWO}, s[8:11], s{KW} offen offset:{128*n} lds"
        if n == 2: t += f"\ns_add_u32 s{KW}, s{KW}, 98304" + (f"\ns_cmp_eq_u32 s{KW}, {20*98304}\ns_cselect_b32 s{KW}, 0, s{KW}" if s & 1 else "")
        g.append((t, f"w{s}"))
    return g

def w2_off(i): return f"s_add_u32 s69, s{WGR + (i >> 2)}, s{WO + (i & 3)}\n"
def w2_lds(i, sbase, off):
    r = []
    for dt in range(5):
        if dt == 0: r.append(w2_off(i) + f"s_add_u32 m0, s{sbase}, {off}\nbuffer_load_dwordx4 v{VL16}, s[12:15], s69 offen sc1 lds")
        elif dt < 4: r.append(f"buffer_load_dwordx4 v{VL16}, s[12:15], s69 offen offset:{dt*1024} sc1 lds")
        else: r.append(f"s_add_u32 m0, s{sbase}, {off+4096}\nbuffer_load_dwordx4 v{VL16B}, s[12:15], s69 offen sc1 lds")
    return r

def phase2_scalars(o, with_h=True):
    r = f"""s_mul_i32 s60, s{CB}, {48*5120}
    s_mul_i32 s61, s{W}, {12*5120}
    s_add_u32 s60, s60, s61
    s_add_u32 s60, s60, {hx(W2F)}
    s_mul_i32 s63, s{RB}, {48*4096}
    s_mul_i32 s61, s{W}, {12*4096}
    s_add_u32 s63, s63, s61
    s_add_u32 s63, s63, {hx(HH)}
    s_mul_i32 s62, s{RBL}, {2*o.rot2}
    s_lshr_b32 s62, {hx(sum((k % 3) << (2*k) for k in range(12)))}, s62""".split("\n")
    for g in range(3):
        r += [f"s_bfe_u32 s61, s62, {hx(0x20000 + 2*g)}", f"s_mul_i32 s64, s61, {4*5120}", f"s_add_u32 s{WGR+g}, s64, s60"]
        if with_h: r += [f"s_lshl_b32 s64, s61, 14", f"s_add_u32 s{HGR+g}, s64, s63"]
    r += [f"s_and_b32 s62, s{CBL}, {o.hrot}"]
    for j in range(4):
        r += [f"s_xor_b32 s61, s62, {j}", f"s_mul_i32 s{WO+j}, s61, 5120"]
        if with_h: r += [f"s_lshl_b32 s{HO+j}, s61, 12"]
    r += f"""s_mul_i32 s67, s{W}, 10240
    s_add_u32 s67, s67, {SLA}
    s_mul_i32 s68, s{W}, {REG}
    s_add_u32 s68, s68, {RING}""".split("\n")
    return "\n".join(r)

def w2_slot(i):
    return w2_lds(i, 67, (i-6)*5120) if i < 8 else w2_lds(i, 68, (i-8)*5120)

AROW = {0:0, 1:1, 2:2, 3:3, 4:8, 5:9, 6:10, 7:11, 256:4, 258:6, 260:12, 262:14, 512:16, 516:17, 1024:18, 1536:19,
        768:20, 772:21, 1280:22, 1792:23, 2048:13}
top = lambda x: 1 << (x.bit_length() - 1)

def bf16_sload(a, sd, sp):
    a(f"s_load_dword s{sd}, s[{sp}:{sp+1}], s76")
def bf16_pick(a, sd):
    a(f"s_lshl_b32 s76, s{sd}, 16\ns_and_b32 s{sd}, s{sd}, 0xffff0000\ns_bitcmp1_b32 s{CH}, 0\ns_cselect_b32 s{sd}, s{sd}, s76")

def dt_setup(a, vdt, sd):
    bf16_pick(a, sd)
    a(f"""v_mov_b32 v{vdt}, {hx(fbits(math.log2(math.e)))}
    v_mul_f32 v{vdt}, s{sd}, v{vdt}
    v_exp_f32 v{vdt}, v{vdt}
    v_cvt_pk_bf16_f32 v{vdt}, v{vdt}, v{vdt}
    v_and_b32 v{vdt}, 0xffff0000, v{vdt}""")

def tab_off(nm): return (32 + AROW[int(nm[1:])])*272 if nm[0] == "R" else int(nm[1:])*272

def products(tasks, loc):
    r = []
    for pi in range(0, len(tasks), 2):
        pr = tasks[pi:pi+2]
        assert len(pr) == 2 and pr[1][1] != pr[0][0] and pr[1][2] != pr[0][0]
        r += [f"v_pk_mul_f16 v{loc[t[0]]}, v{loc[t[1]]}, v{loc[t[2]]} op_sel_hi:[1,0]" for t in pr]
        r += [f"v_pk_fma_f16 v{loc[t[0]]}, v{loc[t[1]]}, v{loc[t[2]]}, v{loc[t[0]]} op_sel:[1,1,0] op_sel_hi:[0,1,1] neg_lo:[1,0,0]" for t in pr]
    return r

def chains(a, o, chs):
    cp = lambda r: f"v[{r}:{r+1}]"
    for c, zr, zi, d, conj in chs: a(f"v_fract_f32 v{c+5}, v{zi}\nv_exp_f32 v{c+4}, v{zr}")
    for c, zr, zi, d, conj in chs: a(f"v_cos_f32 v{c}, v{c+5}\nv_sin_f32 v{c+1}, v{c+5}")
    for c, zr, zi, d, conj in chs:
        if o.kpk: a(f"v_pk_mul_f32 {cp(c)}, {cp(c)}, {cp(c+4)} op_sel_hi:[1,0]")
        else: a(f"v_mul_f32 v{c}, v{c}, v{c+4}\nv_mul_f32 v{c+1}, v{c+1}, v{c+4}")
    for lvl in range(max(len(x[3]) for x in chs)):
        act = [x for x in chs if lvl < len(x[3])]; sq = [x for x in chs if lvl + 1 < len(x[3])]
        cur = lambda x: x[0] + 2*(lvl & 1)
        oth = lambda x: x[0] + 2*((lvl+1) & 1)
        for x in sq:
            if o.kpk: a(f"v_pk_mul_f32 {cp(oth(x))}, {cp(cur(x))}, {cp(cur(x))} op_sel_hi:[1,0]")
            else: a(f"v_add_f32 v{x[0]+5}, v{cur(x)}, v{cur(x)}\nv_mul_f32 v{x[0]+4}, v{cur(x)+1}, v{cur(x)+1}")
        for x in act: a(f"v_cvt_pk_f16_f32 v{x[3][lvl]}, v{cur(x)}, {'-' if x[4] else ''}v{cur(x)+1}")
        for x in sq:
            if o.kpk: a(f"v_pk_fma_f32 {cp(oth(x))}, {cp(cur(x))}, {cp(cur(x))}, {cp(oth(x))} op_sel:[1,1,0] op_sel_hi:[0,1,1] neg_lo:[1,0,0]")
            else: a(f"v_fma_f32 v{oth(x)}, v{cur(x)}, v{cur(x)}, -v{x[0]+4}\nv_mul_f32 v{oth(x)+1}, v{x[0]+5}, v{cur(x)+1}")

XR0 = 4
def srd(a, d, size): a(f"s_mov_b32 s{d+2}, {hx(size)}\ns_mov_b32 s{d+3}, 0x20000")

def entry(a, o):
    a("s_cmp_ge_u32 s2, 256\ns_cbranch_scc1 k_end")
    stamp(a, o, 0)
    a("""s_load_dwordx2 s[4:5], s[0:1], 0
    s_load_dwordx16 s[32:47], s[0:1], 8
    s_load_dwordx2 s[8:9], s[0:1], 80
    s_load_dwordx2 s[16:17], s[0:1], 96
    s_load_dwordx2 s[12:13], s[0:1], 128""")
    if o.code_pf:
        a(f"""s_getpc_b64 s[74:75]
        s_bfe_u32 s60, s2, 0x30003
        v_lshrrev_b32 v2, 4, v0
        v_lshl_add_u32 v2, v2, 3, s60
        v_lshlrev_b32 v2, 7, v2
        v_min_u32 v2, {hx(o.code_bytes-4)}, v2
        global_load_dword v231, v2, s[74:75]""")
    a(f"""v_lshrrev_b32 v1, 6, v0
    v_and_b32 v0, 63, v0
    v_readfirstlane_b32 s77, v1
    v_lshlrev_b32 v{VL16}, 4, v0
    v_lshrrev_b32 v{VG}, 4, v0
    v_and_b32 v{VQ}, 15, v0
    s_lshr_b32 s{RBL}, s2, 5
    s_bfe_u32 s{CBL}, s2, 0x20003
    s_bfe_u32 s{RB}, s2, 0x20001
    s_lshl3_add_u32 s{RB}, s{RB}, s{RBL}
    s_and_b32 s{CB}, s2, 1
    s_lshl2_add_u32 s{CB}, s{CB}, s{CBL}
    s_and_b32 s{W}, s77, 3
    s_lshl2_add_u32 s{CH}, s2, s{W}
    s_cmp_ge_u32 s77, 4
    s_cbranch_scc1 role_h
    v_lshrrev_b32 v229, 5, v0
    v_and_b32 v228, 31, v0
    s_and_b32 s{TB}, s2, 7
    s_lshl_b32 s{TB}, s{TB}, 5
    s_lshr_b32 s60, s2, 3
    s_add_u32 s{TB}, s{TB}, s60
    s_lshl2_add_u32 s60, s{TB}, s{W}
    s_mul_i32 s60, s60, 2560
    v_mul_u32_u24 v1, 1280, v229
    v_lshl_add_u32 v2, v228, 3, s60
    s_min_u32 s71, s2, 239
    s_mul_i32 s70, s71, 205
    s_lshr_b32 s70, s70, 10
    s_mul_i32 s60, s70, 5
    s_sub_u32 s71, s71, s60
    v_add_u32 v1, v1, v2
    s_lshl2_add_u32 s60, s70, s{W}
    s_mul_i32 s60, s60, 40
    s_add_u32 s60, s60, s71
    s_lshl_b32 s60, s60, 8
    v_lshl_add_u32 v2, v{VG}, 10, v{VL16}
    s_lshl_b32 m0, s{W}, 11
    v_add_u32 v2, s60, v2
    v_add_u32 v3, {4*1280 - 1024}, v2
    v_mov_b32 v230, {CNT0}
    v_mov_b32 v128, 0
    ds_write_b32 v230, v128""")
    for c in range(5):
        a(f"global_load_dwordx2 v[{XR0+2*c}:{XR0+2*c+1}], v1, s[4:5] offset:{256*c}")
    a("global_load_lds_dwordx4 v2, s[16:17]\nglobal_load_lds_dwordx4 v3, s[16:17] offset:1024")
    a("s_waitcnt lgkmcnt(0)\ns_barrier\ns_branch role_c")

def ring_offsets(a, o):
    a(f"""v_lshrrev_b32 v{T0}, 3, v0
    v_and_b32 v{T1}, 7, v0
    s_lshl2_add_u32 s60, s{RB}, s{W}
    s_mul_i32 s60, s60, {16*1280}
    v_mul_u32_u24 v{T2}, 1280, v{T0}
    v_xor_b32 v4, v{T1}, v{VG}
    s_and_b32 s61, s{W}, 1
    s_lshl_b32 s61, s61, 2
    v_lshl_add_u32 v{T2}, v4, 4, v{T2}
    v_and_or_b32 v4, v{T0}, 2, s61
    v_add_u32 v{VXO}, s60, v{T2}
    v_xor_b32 v{T1}, v{T1}, v4
    s_lshl_b32 s60, s{W}, 6
    s_add_u32 s60, s60, s{CB}
    s_mul_i32 s60, s60, 384
    v_mul_u32_u24 v{T0}, 3072, v{T0}
    v_xor_b32 v{VXO+1}, 64, v{VXO}
    v_lshl_add_u32 v{T0}, v{T1}, 4, v{T0}
    v_add_u32 v{VXO+1}, {8*1280}, v{VXO+1}
    v_add_u32 v{VWO}, s60, v{T0}""")
    if o.ra == o.rb: a(f"s_add_u32 s60, s{RBL}, s{CBL}\ns_mul_i32 s60, s60, {o.ra}")
    else: a(f"s_mul_i32 s60, s{RBL}, {o.ra}\ns_mul_i32 s61, s{CBL}, {o.rb}\ns_add_u32 s60, s60, s61")
    if o.rc: a(f"s_and_b32 s61, s2, 7\n" + (f"s_mul_i32 s61, s61, {o.rc}\n" if o.rc != 1 else "") + "s_add_u32 s60, s60, s61")
    a(f"""s_mul_i32 s61, s60, {65536//o.rm + 1}
    s_lshr_b32 s61, s61, 16
    s_mul_i32 s61, s61, {o.rm}
    s_sub_u32 s60, s60, s61
    s_mul_i32 s{KX}, s60, {128*o.rk}
    s_mul_i32 s{KW}, s60, {2*98304*o.rk}
    s_lshl_b32 s{XB}, s{W}, 11
    s_mul_i32 s{WB}, s{W}, 3072""")

def role_c(a, o):
    ACC, CS, FR, B1R, VXR, WREG = 4, 52, [64, 92], 120, 126, 128
    ST, VWR, ONES = 232, 241, 244
    a(".p2align 6\nrole_c:")
    if o.prio_c: a(f"s_setprio {o.prio_c}")
    PAR, WT = 128, 132
    VI, VHI, XR = 228, 229, XR0
    a("s_load_dwordx2 s[20:21], s[0:1], 88\ns_load_dwordx2 s[28:29], s[0:1], 120")
    for i in range(1, 4): a(f"v_mov_b32 v{PAR+i}, 0")
    srd(a, 12, WS_END); srd(a, 20, F*2); srd(a, 28, 256)
    if o.wait:
        SK = a.lab("ini")
        a(f"""s_cmp_lg_u32 s{CH}, 1022
        s_cbranch_scc1 {SK}
        v_lshlrev_b32 v{T1}, 8, v0
        v_mov_b32 v{T0}, 1
        s_mov_b64 exec, 0xffff
        buffer_store_dword v{PAR}, v{T1}, s[12:15], 0 offen sc1
        s_waitcnt vmcnt(0)
        s_mov_b64 exec, 1
        buffer_store_dword v{T0}, off, s[28:31], 0 sc1
        s_mov_b64 exec, -1
        {SK}:""")
    a(f"""v_lshrrev_b32 v{T0}, 2, v{VQ}
    v_and_b32 v{T2}, 3, v0
    v_lshl_add_u32 v{T1}, v{VG}, 3, v{T0}
    v_lshlrev_b32 v{T2}, 3, v{T2}
    s_lshl_b32 s60, s{W}, 6
    v_lshl_add_u32 v{T1}, v{T1}, 8, v{T2}
    v_add_u32 v2, s60, v{T1}""")
    for i in range(2):
        a(f"""s_lshl2_add_u32 s60, s71, s{W}
        s_lshl1_add_u32 s60, s60, {i}
        s_mul_i32 s61, s60, 205
        s_lshr_b32 s61, s61, 10
        s_mul_i32 s61, s61, 47
        s_add_u32 s61, s61, s70
        s_mul_i32 s61, s61, 5
        s_add_u32 s60, s60, s61
        s_lshl_b32 s60, s60, 10
        s_add_u32 s60, s60, {hx(W2F)}
        s_cmp_ge_u32 s2, 240
        s_cselect_b32 s{72+i}, {OOB}, s60""")
    if o.wait:
        a(f"""s_lshl3_add_u32 s60, s{RB}, s{CB}
        s_lshl2_add_u32 s60, s60, s{W}
        s_lshl_b32 s60, s60, 7
        s_add_u32 s74, s60, {hx(FL_H)}
        s_lshl2_add_u32 s61, s{CB}, s{W}
        s_lshl_b32 s61, s61, 5
        s_add_u32 s61, s61, s{RB}
        s_lshl_b32 s61, s61, 7
        s_add_u32 s61, s61, {hx(FL_YP - 16)}
        v_add_u32 v3, s61, v{VL16}
        v_writelane_b32 v3, s74, 0""")
    st = ln_unit(a, o, XR, VI, VHI)
    for i in range(2):
        for h in range(2):
            a(f"ds_read_b64_tr_b16 v[{WT+4*i+2*h}:{WT+4*i+2*h+1}], v2 offset:{i*32 + h*1024}")
    if o.wait: a(f"s_mov_b64 exec, 7\nbuffer_store_dwordx4 v[{PAR}:{PAR+3}], v3, s[12:15], 0 offen sc1\ns_mov_b64 exec, -1")
    su = f"""v_lshrrev_b32 v{T0}, 1, v{VQ}
    v_xor_b32 v{T0}, v{T0}, v{VG}
    v_lshlrev_b32 v{T0}, 4, v{T0}
    v_lshl_add_u32 v{T0}, v{VQ}, 7, v{T0}
    v_add_u32 v{VXR}, {XSL[0]}, v{T0}
    v_xor_b32 v{VXR+1}, 64, v{VXR}
    v_lshrrev_b32 v{T0}, 2, v{VQ}
    v_mul_u32_u24 v{T1}, 3072, v{VG}
    v_and_b32 v{T2}, 3, v0
    v_lshl_add_u32 v{T1}, v{T0}, 7, v{T1}
    v_lshl_add_u32 v{T1}, v{T2}, 3, v{T1}
    v_lshrrev_b32 v{T0}, 1, v{T0}
    v_and_b32 v{T2}, 1, v{VG}
    v_lshl_or_b32 v{T0}, v{T2}, 1, v{T0}
    s_mul_i32 s60, s{W}, 3""".split("\n")
    for n in range(3):
        su += f"""s_add_u32 s61, s60, {n}
        s_lshr_b32 s66, s61, 2
        s_lshl_b32 s66, s66, 10
        s_add_u32 s66, s66, {WBASE}
        s_and_b32 s61, s61, 3
        v_xor_b32 v{T2}, s61, v{T0}
        v_lshl_add_u32 v{T2}, v{T2}, 5, v{T1}
        v_add_u32 v{VWR+n}, s66, v{T2}""".split("\n")
    su += [f"v_mov_b32 v{ONES+i}, 0x3f803f80" for i in range(4)] + [f"v_add_u32 v{VL16B}, 4096, v{VL16}"]
    st += [f"buffer_store_dwordx4 v[{WT+4*i}:{WT+4*i+3}], v{VL16}, s[12:15], s{72+i} offen sc1" for i in range(2)]
    per = -(-len(su)//len(st))
    for i, t in enumerate(st):
        a("\n".join(su[i*per:(i+1)*per])); a(t)
    if o.wait: a(f"s_cmp_eq_u32 s{W}, 0\ns_cselect_b32 s60, 0, {OOB}\nbuffer_load_dword v{VPOLL}, off, s[28:31], s60 sc1")
    def signal_pre():
        if not o.wait: return
        def f():
            poll(a, o, VPOLL, None, 28, 0, 1, "1", name="RDY")
            a("s_and_b32 s60, s2, 15\ns_lshl_b32 s60, s60, 8")
            add_one(a, 60, T1)
        only_w0(a, f)
    stamp(a, o, 9)
    vm = VM()
    b1_ld = [(f"buffer_load_dwordx2 v[{B1R+2*n}:{B1R+2*n+1}], v{T2}, s[20:23], s65 offen offset:{32*n}", "b1") for n in range(3)]
    shadow = (phase2_scalars(o) + f"""
    s_mul_i32 s65, s{CB}, 384
    s_mul_i32 s61, s{W}, 96
    s_add_u32 s65, s65, s61
    v_lshlrev_b32 v{T2}, 3, v{VG}
    s_lshl_b32 s66, s{RB}, 9
    s_add_u32 s66, s66, {hx(STATS)}
    v_lshlrev_b32 v{T0}, 3, v{VQ}""").split("\n")
    def w2_reg(i, slot):
        r = []
        for dt in range(5):
            d = WREG + slot*20 + dt*4
            if dt < 4: r.append((w2_off(i) if dt == 0 else "") + f"buffer_load_dwordx4 v[{d}:{d+3}], v{VL16}, s[12:15], s69 offen offset:{dt*1024} sc1")
            else: r.append(f"buffer_load_dwordx4 v[{d}:{d+3}], v{VL16B}, s[12:15], s69 offen sc1")
        return r
    pf = [t for i in range(5) for t in w2_reg(i, i)]
    def reads(s):
        fs = FR[s & 1]; r = []
        for n in range(3):
            for h in range(2):
                r.append(f"ds_read_b64_tr_b16 v[{fs+4*n+2*h}:{fs+4*n+2*h+1}], v{VWR+n} offset:{WSL[s%6] - WBASE + h*512}")
        for i in range(4):
            r.append(f"ds_read_b128 v[{fs+12+4*i}:{fs+15+4*i}], v{VXR+(s&1)} offset:{XSL[(s>>1)%3]-XSL[0]+i*2048}")
        return r
    def mfmas(s):
        fs = FR[s & 1]; r = []
        for n in range(3):
            for i in range(4):
                c = ACC + (n*4+i)*4
                r.append(f"v_mfma_f32_16x16x32_bf16 v[{c}:{c+3}], v[{fs+4*n}:{fs+4*n+3}], v[{fs+12+4*i}:{fs+15+4*i}], {'0' if s == 0 else f'v[{c}:{c+3}]'}")
            c = CS + 4*n
            if not o.x_nocs: r.append(f"v_mfma_f32_16x16x32_bf16 v[{c}:{c+3}], v[{fs+4*n}:{fs+4*n+3}], v[{ONES}:{ONES+3}], {'0' if s == 0 else f'v[{c}:{c+3}]'}")
        return r
    B1F, VH = 72, 84
    for s in range(21):
        dm = []
        if s < 20:
            a(f"s_waitcnt {'vmcnt(0) ' if s == o.sig_at else ''}lgkmcnt(0)\ns_barrier")
            if s == o.sig_at: signal_pre()
            if s == 0: stamp(a, o, 2)
            if s % 2 == 0: stamp(a, o, [1,9,10,2,3,4,5,6,7,8][s//2], g1=1)
            if s == o.pre_chk + 1:
                for i in range(4): dm.append((f"buffer_load_dwordx2 v[{ST+2*i}:{ST+2*i+1}], v{T0}, s[12:15], s66 offen offset:{128*i} sc1", "st"))
            if s >= max(o.pre_chk + 2, 15):
                for _ in range(o.g1_ld): dm.append((pf.pop(0), "w2"))
            fill = [(x, None) for x in reads(s)]
            if s > o.sig_at:
                fill += [(x, None) for x in shadow[:8]]; shadow = shadow[8:]
            if s == o.sig_at + 8: assert not shadow; dm += b1_ld
        else:
            a("s_waitcnt lgkmcnt(0)\ns_barrier")
            st = []
            for n in range(3):
                for h in range(2):
                    st.append(f"v_lshlrev_b32 v{B1F+4*n+2*h}, 16, v{B1R+2*n+h}\nv_and_b32 v{B1F+4*n+2*h+1}, 0xffff0000, v{B1R+2*n+h}")
            st.append(f"v_and_b32 v{T0}, 1, v{VG}\nv_lshrrev_b32 v{T1}, 1, v{VG}")
            st.append(f"v_lshlrev_b32 v{T1}, 8, v{T1}\nv_lshl_add_u32 v{T1}, v{VQ}, 4, v{T1}")
            st.append(f"v_lshl_add_u32 v{VH}, v{T0}, 10, v{T1}\ns_mul_i32 s60, s{CB}, 12\ns_mul_i32 s61, s{W}, 3\ns_add_u32 s60, s60, s61\ns_mul_i32 s66, s{RB}, {48*4096}\ns_add_u32 s66, s66, {hx(HH)}")
            for n in range(3):
                st.append(f"s_add_u32 s61, s60, {n}\ns_lshr_b32 s62, s61, 1\ns_lshl_b32 s62, s62, 12\ns_and_b32 s61, s61, 1\ns_lshl_b32 s61, s61, 9\ns_add_u32 s62, s62, s61\ns_add_u32 s{63+n}, s62, s66")
            c1 = -2*math.sqrt(2/math.pi)*math.log2(math.e); c2 = c1*0.044715
            st.append(f"s_mov_b32 s60, {hx(fbits(c2))}\ns_mov_b32 s61, {hx(fbits(c1))}\nv_mov_b32 v{VH+1}, s61")
            fill = [(t, None) for t in st]
            for _ in range(o.g1_ld): dm.append((pf.pop(0), "w2"))
        weave(a, vm, mfmas(s-1) if s >= 1 else [], dm, fill)
    stamp(a, o, 3)
    TP, OUT = 64, [88, 92]
    ntile = 0
    for n in range(3):
        for q in range(2):
            ob = OUT[(n*2+q) & 1]
            for il in range(2):
                i = 2*q + il
                c = ACC + (n*4+i)*4
                def ld(k):
                    for _ in range(k):
                        if pf: a(pf.pop(0)); vm.add("w2")
                if ntile < o.gelu_pk:
                    S = f"v[{ST+2*i}:{ST+2*i+1}]"
                    P = [f"v[{TP+2*h}:{TP+2*h+1}]" for h in range(2)]
                    Q = [f"v[{TP+4+2*h}:{TP+4+2*h+1}]" for h in range(2)]
                    for h in range(2): a(f"v_pk_fma_f32 {P[h]}, {S}, v[{CS+4*n+2*h}:{CS+4*n+2*h+1}], v[{B1F+4*n+2*h}:{B1F+4*n+2*h+1}] op_sel:[1,0,0] op_sel_hi:[1,1,1]")
                    for h in range(2): a(f"v_pk_fma_f32 {P[h]}, v[{c+2*h}:{c+2*h+1}], {S}, {P[h]} op_sel_hi:[1,0,1]")
                    for h in range(2): a(f"v_pk_mul_f32 {Q[h]}, {P[h]}, {P[h]}")
                    for h in range(2): a(f"v_pk_fma_f32 {Q[h]}, {Q[h]}, s[60:61], s[60:61] op_sel:[0,0,1] op_sel_hi:[1,0,1]")
                    ld(o.gelu_ld//2)
                    for h in range(2): a(f"v_pk_mul_f32 {Q[h]}, {Q[h]}, {P[h]}")
                    for e in range(4): a(f"v_exp_f32 v{TP+4+e}, v{TP+4+e}")
                    ld((o.gelu_ld+1)//2)
                    for h in range(2): a(f"v_pk_add_f32 {Q[h]}, {Q[h]}, 1.0 op_sel_hi:[1,0]")
                    for e in range(4): a(f"v_rcp_f32 v{TP+4+e}, v{TP+4+e}")
                    for h in range(2): a(f"v_pk_mul_f32 {P[h]}, {P[h]}, {Q[h]}")
                else:
                    for e in range(4): a(f"v_fma_f32 v{TP+e}, v{CS+4*n+e}, v{ST+2*i+1}, v{B1F+4*n+e}")
                    for e in range(4): a(f"v_fmac_f32 v{TP+e}, v{c+e}, v{ST+2*i}")
                    for e in range(4): a(f"v_mul_f32 v{TP+4+e}, v{TP+e}, v{TP+e}")
                    for e in range(4): a(f"v_fma_f32 v{TP+4+e}, v{TP+4+e}, s60, v{VH+1}")
                    ld(o.gelu_ld//2)
                    for e in range(4): a(f"v_mul_f32 v{TP+4+e}, v{TP+4+e}, v{TP+e}")
                    for e in range(4): a(f"v_exp_f32 v{TP+4+e}, v{TP+4+e}")
                    for e in range(4): a(f"v_add_f32 v{TP+4+e}, 1.0, v{TP+4+e}")
                    for e in range(4): a(f"v_rcp_f32 v{TP+4+e}, v{TP+4+e}")
                    ld((o.gelu_ld+1)//2)
                    for e in range(4): a(f"v_mul_f32 v{TP+e}, v{TP+e}, v{TP+4+e}")
                ntile += 1
                for h in range(2): a(f"v_cvt_pk_bf16_f32 v{ob+2*il+h}, v{TP+2*h}, v{TP+2*h+1}")
            a(f"v_permlane16_swap_b32 v{ob}, v{ob+2}\nv_permlane16_swap_b32 v{ob+1}, v{ob+3}")
            a(f"buffer_store_dwordx4 v[{ob}:{ob+3}], v{VH}, s[12:15], s{63+n} offen offset:{2048*q} sc1"); vm.add("h")
    stamp(a, o, 4)
    A2, HB = 0, [80, 96, 112]
    VLA, VLR, VIW, VCN, VONE = 250, 251, 252, 253, 254
    a(f"""v_mul_u32_u24 v{T1}, 336, v{VQ}
    v_lshl_add_u32 v{T1}, v{VG}, 4, v{T1}
    v_add_u32 v{VIW}, s68, v{T1}
    v_add_u32 v{VLA}, s67, v{VL16}
    v_add_u32 v{VLR}, s68, v{VL16}
    v_lshlrev_b32 v1, 9, v0
    v_mov_b32 v{VCN}, {CNT}
    v_mov_b32 v{VONE}, 1
    s_lshl_b32 s66, s{RB}, 12
    s_lshr_b32 s60, s{CB}, 1
    s_lshl_b32 s60, s60, 7
    s_add_u32 s66, s66, s60
    s_and_b32 s60, s{CB}, 1
    s_lshl2_add_u32 s66, s60, s66
    s_add_u32 s66, s66, {hx(FL_H)}""")
    pf += w2_reg(5, 5)
    if o.htouch:
        a(f"""s_add_u32 s60, s{HGR+1}, s{HO}
        s_add_u32 s61, s{HGR+2}, s{HO}
        s_sub_u32 s61, s61, 4096
        v_mov_b32 v2, s60
        v_mov_b32 v3, s61
        v_cmp_gt_u32 vcc, 32, v0
        v_cndmask_b32 v2, v3, v2, vcc
        v_lshl_add_u32 v2, v0, 7, v2""")
    for _ in range(min(o.n1, len(pf))): a(pf.pop(0)); vm.add("w2")
    a(f"s_waitcnt vmcnt({vm.cnt('h')})")
    stamp(a, o, 5)
    if o.wait:
        SK = a.lab("hs")
        lds_arrive(a, 0, VCN, VONE, rtn=0)
        a(f"""s_cbranch_scc0 {SK}
        s_mov_b64 exec, 0xff
        buffer_store_dword v{VONE}, v1, s[12:15], s66 offen sc1
        s_mov_b64 exec, -1
        {SK}:""")
    while pf: a(pf.pop(0)); vm.add("w2")
    tailq = [t for i in range(6, 12) for t in w2_slot(i)]
    assert o.n2 >= 10
    lds_wait4(a, o, 3, VCN, 0)
    for _ in range(o.n2): a(tailq.pop(0))
    spoll(a, o, "s_load_dwordx2 s[62:63], s[12:13], s74 glc", "s_and_b32 s62, s62, s63\ns_cmp_eq_u32 s62, 1", "HF", o.hsleep)
    if o.prio_g2 != o.prio_c: a(f"s_setprio {o.prio_g2}")
    stamp(a, o, 6)
    HX = WREG
    def h_ld(i, t):
        b = HB[i % 3] if i < 11 else HX
        return f"s_add_u32 s66, s{HGR + (i >> 2)}, s{HO + (i & 3)}\nbuffer_load_dwordx4 v[{b+4*t}:{b+4*t+3}], v{VL16}, s[12:15], s66 offen offset:{1024*t} {o.h_flags}"
    order = [(i, t) for i in range(9) for t in range(4)] + [(i, t) for t in range(4) for i in (9, 10, 11)]
    at = {}
    for v, (i, t) in enumerate(order):
        if i < 3: a(h_ld(i, t)); continue
        free = order.index((i-3, t)) if i < 11 else order.index((6, 3))
        at.setdefault(max(free, v - o.hlead), []).append(h_ld(i, t))
    if o.htouch: a(f"buffer_load_dword v{VPOLL}, v2, s[12:15], 0 offen sc1")
    for t in tailq: a(t)
    def mf(i, t, dt):
        wb = WREG + (i % 6)*20; hb = HB[i % 3] if i < 11 else HX
        c = A2 + (t*5+dt)*4
        return f"v_mfma_f32_16x16x32_bf16 v[{c}:{c+3}], v[{wb+4*dt}:{wb+4*dt+3}], v[{hb+4*t}:{hb+4*t+3}], {'0' if i == 0 else f'v[{c}:{c+3}]'}"
    def img(t, dt):
        cc = A2 + (t*5+dt)*4
        return f"ds_write_b128 v{VIW}, v[{cc}:{cc+3}] offset:{t*16*336 + dt*64}"
    for v, (i, t) in enumerate(order):
        if t == 0 and i in (0, 1, 2, 3, 4, 6, 8, 9): stamp(a, o, [1,9,10,2,3,None,4,None,5,6][i], g1=2)
        for dt in range(5):
            a(mf(i, t, dt))
            k = t*5 + dt
            if 1 <= i <= 6 and k in (0, 2, 7, 12, 17):
                j = (0, 2, 7, 12, 17).index(k); d = WREG + (i-1)*20 + 4*j
                vb, off = (VLA, (i-1)*5120) if i <= 2 else (VLR, (i-3)*5120)
                a(f"ds_read_b128 v[{d}:{d+3}], v{vb} offset:{off+j*1024}")
            k = (i-9)*5 + dt
            if i >= 9 and t and k % 3 == 2: a(img(t-1, k//3))
        for x in at.get(v, []): a(x)
        if i == 11 and t: lds_arrive(a, 4 + t - 1, VCN, VONE)
    stamp(a, o, 7)
    stamp(a, o, 7, g1=2)
    for dt in range(5): a(img(3, dt))
    lds_arrive(a, 7, VCN, VONE)
    if o.prof:
        a("s_waitcnt lgkmcnt(0)")
        stamp(a, o, 8); stamp(a, o, 8, g1=2)
        stamp_flush(a, o, 11, 0, T1)
    a("s_endpgm")

def ln_unit(a, o, XR, VI, VHI):
    XF = XR + 12
    SUM, SQ, SC, MU, S2, Q2 = XR+32, XR+33, XR+34, XR+35, XR+36, XR+37
    VWI, VRI, VXS, VSS = XR+38, XR+39, XR+40, XR+41
    TR = XF
    a(f"""s_mul_i32 s60, s{W}, 2688
    s_add_u32 s60, s60, {LNI}
    v_mul_u32_u24 v{T0}, 1344, v{VHI}
    v_lshrrev_b32 v{T2}, 2, v{VQ}
    v_lshl_add_u32 v{T0}, v{VI}, 3, v{T0}
    v_and_b32 v{T1}, 3, v0
    v_add_u32 v{VWI}, s60, v{T0}
    v_lshlrev_b32 v{T1}, 3, v{T1}
    v_mul_u32_u24 v{VRI}, 1344, v{T2}
    v_lshrrev_b32 v{VXS}, 2, v0
    v_lshl_add_u32 v{VRI}, v{VG}, 5, v{VRI}
    s_lshl_b32 s60, s{W}, 7
    s_add_u32 s60, s60, {LNI}
    v_lshlrev_b32 v{VXS}, 14, v{VXS}
    v_add3_u32 v{VRI}, v{VRI}, v{T1}, s60
    v_lshl_add_u32 v{VXS}, v{T1}, 1, v{VXS}
    v_lshlrev_b32 v{VSS}, 3, v{VHI}
    s_lshl_b32 s61, s{TB}, 6
    s_lshl_b32 s62, s{W}, 18
    s_add_u32 s62, s62, s61
    s_add_u32 s62, s62, {hx(XN)}
    s_lshl4_add_u32 s63, s{W}, s61
    s_add_u32 s63, s63, {hx(STATS)}
    s_add_u32 s64, s62, {hx(4<<18)}
    s_add_u32 s65, s62, {hx(8<<18)}
    s_cmp_ge_u32 s{W}, 2
    s_cselect_b32 s65, {OOB}, s65
    s_mov_b32 s60, 0x3f803f80
    v_mov_b32 v{SUM}, 0
    v_mov_b32 v{SQ}, 0""")
    unp = lambda k: [f"v_lshlrev_b32 v{XF+2*k}, 16, v{XR+k}", f"v_and_b32 v{XF+2*k+1}, 0xffff0000, v{XR+k}"]
    for k in range(10): a(f"v_dot2c_f32_bf16 v{SUM}, s60, v{XR+k}\nv_dot2c_f32_bf16 v{SQ}, v{XR+k}, v{XR+k}")
    fill = [t for k in range(10) for t in unp(k)]
    stamp(a, o, 1)
    def fl(n):
        for _ in range(n):
            if fill: a(fill.pop(0))
    fl(2)
    for r in (8, 4, 2, 1):
        fl(2)
        a(f"v_add_f32_dpp v{SUM}, v{SUM}, v{SUM} row_ror:{r} row_mask:0xf bank_mask:0xf\nv_add_f32_dpp v{SQ}, v{SQ}, v{SQ} row_ror:{r} row_mask:0xf bank_mask:0xf")
    a(f"v_mov_b32 v{T0}, v{SUM}\nv_mov_b32 v{T1}, v{SQ}"); fl(2)
    a(f"v_permlane16_swap_b32 v{SUM}, v{T0}\nv_permlane16_swap_b32 v{SQ}, v{T1}"); fl(1)
    a(f"v_add_f32 v{SUM}, v{SUM}, v{T0}\nv_add_f32 v{SQ}, v{SQ}, v{T1}"); fl(1)
    a(f"v_mul_f32 v{MU}, {hx(fbits(1/640))}, v{SUM}\nv_mul_f32 v{SQ}, {hx(fbits(1/640))}, v{SQ}"); fl(1)
    a(f"v_cvt_pk_bf16_f32 v{SUM}, v{MU}, v{MU}\nv_fma_f32 v{SQ}, -v{MU}, v{MU}, v{SQ}"); fl(1)
    a(f"v_and_b32 v{S2}, 0xffff0000, v{SUM}\nv_max_f32 v{SC}, 0, v{SQ}"); fl(99)
    rnd = lambda v: [f"v_cvt_pk_bf16_f32 v{v}, v{v}, v{v}", f"v_and_b32 v{v}, 0xffff0000, v{v}"]
    eps = hx(fbits(1e-5))
    ch1 = [f"v_cvt_pk_bf16_f32 v{SQ}, v{SC}, v{SC}", f"v_and_b32 v{SQ}, 0xffff0000, v{SQ}", f"v_add_f32 v{SQ}, {eps}, v{SQ}"] + rnd(SQ) + [f"v_sqrt_f32 v{SQ}, v{SQ}"] + rnd(SQ) + [f"v_rcp_f32 v{SQ}, v{SQ}"]
    ch2 = [f"v_mul_f32 v{SC}, v{SC}, v{SQ}", f"v_mul_f32 v{SC}, v{SC}, v{SQ}"] + rnd(SC) + [f"v_add_f32 v{SC}, {eps}, v{SC}"] + rnd(SC) + [f"v_sqrt_f32 v{SC}, v{SC}"] + rnd(SC) + [f"v_rcp_f32 v{SC}, v{SC}", f"v_mul_f32 v{SC}, v{SC}, v{SQ}", f"v_mul_f32_e64 v{MU}, -v{MU}, v{SC}"]
    pr = lambda k: f"v[{XF+2*k}:{XF+2*k+1}]"
    cv = [f"v_cvt_pk_bf16_f32 v{XR+k}, v{XF+2*k}, v{XF+2*k+1}" for k in range(10)]
    el1 = [f"v_pk_add_f32 {pr(k)}, {pr(k)}, v[{S2}:{Q2}] op_sel_hi:[1,0] neg_lo:[0,1] neg_hi:[0,1]" for k in range(10)] + cv
    el2 = [t for k in range(10) for t in unp(k)] + [f"v_pk_mul_f32 {pr(k)}, v[{SUM}:{SQ}], {pr(k)} op_sel:[1,0] op_sel_hi:[1,1]" for k in range(10)]
    for ch, el in ((ch1, el1), (ch2, el2)):
        for k, t in enumerate(el):
            if k % 2 == 0 and ch: a(ch.pop(0))
            a(t)
        assert not ch
    for c in range(5):
        a(cv[2*c]); a(cv[2*c+1])
        a(f"ds_write_b64 v{VWI}, v[{XR+2*c}:{XR+2*c+1}] offset:{256*c}")
    a(f"""s_mov_b32 exec_lo, 1
    s_mov_b32 exec_hi, 1
    buffer_store_dwordx2 v[{SC}:{MU}], v{VSS}, s[12:15], s63 offen sc1
    s_mov_b64 exec, -1
    v_mov_b32 v{T0}, 1
    s_waitcnt vmcnt(1)""")
    lds_arrive(a, 0, 230, T0)
    lds_wait4(a, o, 0, 230, T0)
    for m in range(3):
        for h in range(2):
            a(f"ds_read_b64_tr_b16 v[{TR+4*m+2*h}:{TR+4*m+2*h+1}], v{VRI} offset:{m*512 + h*4*1344}")
    return [f"buffer_store_dwordx4 v[{TR+4*m}:{TR+4*m+3}], v{VXS}, s[12:15], s{so} offen sc1" for m, so in enumerate((62, 64, 65))]

def role_h(a, o):
    a("role_h:")
    DA, FA, FB = 4, 20, 52
    VAL = [4, 100, 152]
    SEED, UR, BAND = 56, 84, 204
    VRA, VRB, VSC = 224, 225, 226
    VA, VA2, VB, VK2, VK3, VSH, VDS = 232, 233, 234, 235, 236, 237, 238
    VKW, VKZ, VUZ, VUW, VD2, VD3 = 239, 240, 241, 242, 243, 244
    VI, VHI, VCN, VONE = 246, 247, 227, 245
    ZQ, AFM = 228, 80
    pro = [x for g in (dma_x(0), dma_w(0), dma_w(1), dma_x(1), dma_w(2), dma_w(3), dma_x(2), dma_w(4), dma_w(5)) for x in g]
    npro = o.npro
    ring_offsets(a, o)
    srd(a, 4, T*D*2); srd(a, 8, D*F*2)
    a(f"""s_min_u32 s76, s{CH}, 639
    s_mul_i32 s60, s76, 384
    v_add_u32 v21, s60, v{VL16}
    s_mul_i32 s{UBW}, s{W}, 2304
    s_lshl_b32 s76, s76, 1
    s_and_b32 s76, s76, 0x7fc
    s_cmp_lt_u32 s2, 160
    s_cselect_b64 exec, 0xffffff, 1""")
    for k in range(6):
        a(f"s_add_u32 m0, s{UBW}, {PARB + 384*k}\nglobal_load_lds_dwordx4 v21, s[{32+2*k}:{33+2*k}] {o.par_flags}")
    a("s_mov_b64 exec, -1")
    bf16_sload(a, 79, 44); bf16_sload(a, 77, 46)
    a("s_barrier")
    for t, tag in pro[:o.n0]: a(t)
    if o.prio_h: a(f"s_setprio {o.prio_h}")
    a("s_load_dwordx2 s[16:17], s[0:1], 112\ns_load_dwordx2 s[24:25], s[0:1], 104")
    srd(a, 12, WS_END); srd(a, 16, T*D*2); srd(a, 24, D*2)
    a(f"v_lshrrev_b32 v{VHI}, 5, v0\nv_and_b32 v{VI}, 31, v0\ns_mul_i32 s{KGB}, s{W}, {KG}")
    rest = list(pro[o.n0:npro])
    def mix(its, n):
        n = min(n, len(rest)); k = 0
        for i, t in enumerate(its):
            while k < n and (k + 1)*len(its) <= (i + 1)*(n + 0.5) + 0.5*len(its): main(rest.pop(0)[0]); k += 1
            main(t)
        while k < n: main(rest.pop(0)[0]); k += 1
    main = a
    KEB = 70
    items = []
    VPO = VL16B
    items += [f"s_cmp_eq_u32 s{W}, 0\ns_cselect_b32 s60, 0, {OOB}\nv_lshl_add_u32 v{VPO}, v0, 8, s60"]
    items += [f"v_mov_b32 v{ZQ+i}, 0" for i in range(4)] + [f"v_mov_b32 v{VCN}, {CNT}", f"v_mov_b32 v{VONE}, 1"]
    items += f"""s_lshl_b32 s66, s2, 14
    s_lshl_b32 s60, s{W}, 12
    s_add_u32 s66, s66, s60
    s_add_u32 s66, s66, {hx(XN)}""".split("\n") + [f"s_cmp_lt_u32 s2, 160\ns_cselect_b32 s66, s66, {OOB}"]
    items += f"""s_mul_i32 s{KEB}, s{W}, {KE}
    s_mul_i32 s{UBW}, s{W}, {UP}
    s_add_u32 s{UBW}, s{UBW}, {UB}
    v_sub_u32 v{T0}, 63, v0
    v_lshl_add_u32 v{VKW}, v{T0}, 4, s{KEB}
    v_lshl_add_u32 v{VD2}, v{T0}, 2, s{KEB}
    v_lshrrev_b32 v{T0}, 1, v{T0}
    v_lshl_add_u32 v{VD3}, v{T0}, 2, s{KEB}
    v_add_u32 v{VKZ}, s{KEB}, v{VL16}
    v_add_u32 v{VUZ}, s{UBW}, v{VL16}
    v_and_b32 v{T0}, 3, v0
    v_mul_u32_u24 v{T0}, {UP}, v{T0}
    v_lshrrev_b32 v{T1}, 2, v0
    v_lshl_add_u32 v{T0}, v{T1}, 4, v{T0}
    s_lshl_b32 s60, s{W}, 10
    s_add_u32 s60, s60, {UB + 480}
    v_add_u32 v{VUW}, s60, v{T0}
    v_lshlrev_b32 v{T0}, 3, v{VG}
    v_sub_u32 v{T2}, v{T0}, v{VQ}
    v_add_u32 v{T0}, 16, v{T2}
    v_lshrrev_b32 v{T0}, 1, v{T0}
    v_and_b32 v{T1}, 1, v0
    v_xor_b32 v{T1}, 1, v{T1}
    v_mul_u32_u24 v{T1}, {CPB}, v{T1}
    v_lshl_add_u32 v{T0}, v{T0}, 2, v{T1}
    v_add_u32 v{VA}, s{KEB}, v{T0}
    v_add_u32 v{VA2}, 512, v{VA}
    v_lshlrev_b32 v{T0}, 5, v{VQ}
    v_lshl_add_u32 v{T0}, v{VG}, 4, v{T0}
    v_add_u32 v{VB}, s{UBW}, v{T0}
    v_lshlrev_b32 v{T0}, 2, v{VG}
    v_sub_u32 v{T0}, v{T0}, v{VQ}
    v_add_u32 v{T0}, 15, v{T0}
    s_add_u32 s60, s{KEB}, {D3O}
    v_lshl_add_u32 v{VK3}, v{T0}, 2, s60
    s_add_u32 s60, s{KEB}, {D2O}
    v_lshl_add_u32 v{VK2}, v{T0}, 3, s60
    v_add_u32 v{T2}, 15, v{T2}
    v_min_u32 v{VSH}, 31, v{T2}
    v_mul_u32_u24 v{T0}, 272, v{VI}
    v_subrev_u32 v{T1}, 16, v{VI}
    v_lshl_add_u32 v{T0}, v{VHI}, 4, v{T0}""".split("\n")
    items += [f"v_cmp_lt_u32 vcc, 24, v{VI}\nv_add_u32 v{VRB}, s{KGB}, v{T0}\nv_cndmask_b32 v{T1}, v{VI}, v{T1}, vcc"]
    for ln, row in ((5, 4), (7, 12), (13, 12), (24, 13)):
        items += [f"v_writelane_b32 v{T1}, {row}, {ln}", f"v_writelane_b32 v{T1}, {row}, {ln+32}"]
    items += [f"v_mul_u32_u24 v{T0}, 272, v{T1}", f"v_lshl_add_u32 v{T0}, v{VHI}, 4, v{T0}", f"v_add_u32 v{VRA}, s{KGB}, v{T0}"]
    def band(d, lo, hi, mul):
        r = [f"s_mov_b32 s62, {hx(((1 << (hi-lo+1)) - 1) << (lo+15))}\nv_lshrrev_b32_e64 v{T2}, v{VSH}, s62", f"v_and_b32 v{T2}, 0xff, v{T2}", f"v_lshl_or_b32 v{T2}, v{T2}, 15, v{T2}"]
        r += [f"v_lshrrev_b32 v{d+i}, {2*i}, v{T2}" for i in range(1, 4)]
        r += [f"v_and_b32 v{d+i}, 0x10001, v{d+i if i else T2}" for i in range(4)]
        return r + [f"v_mul_u32_u24 v{d+i}, {mul}, v{d+i}" for i in range(4)]
    for bi, (lo, hi) in enumerate([(6, 10), (3, 5), (11, 13), (4, 12), (5, 11)]): items += band(BAND + 4*bi, lo, hi, "0x3f80")
    items += band(AFM, 12, 13, "1")[:3] + [f"v_mov_b32 v{VSH}, v{T2}"]
    PAR, CP, MX, ZL, ZR, VDT, Z8 = 110, 128, 134, 135, 136, 137, 138
    a(f"s_add_u32 s60, s{UBW}, {PARB}\nv_lshl_add_u32 v20, v0, 1, s60")
    mix([f"v_mov_b32 v{PAR+i}, 0" for i in range(18)] + items, o.na)
    dt_setup(a, VDT, 79)
    bf16_pick(a, 77)
    a(f"""v_mov_b32 v{VDS}, s77
    v_mul_f32 v{ZL}, {hx(fbits(math.log2(math.e)))}, v{VDT}
    v_mul_f32 v{ZR}, {hx(fbits(1/(2*math.pi)))}, v{VDT}
    s_waitcnt vmcnt({o.n0 + o.na})""")
    stamp(a, o, 1)
    for k in (2, 4, 5, 3, 0, 1):
        for p in range(3):
            a(f"ds_read_u16_d16_hi v{PAR+6*p+k}, v20 offset:{384*k + 128*p}")
    a = Asm()
    for p in range(3):
        b = PAR + 6*p + 2
        a(f"v_mul_f32 v{CP+2*p}, v{b}, v{b+2}\nv_mul_f32 v{CP+2*p+1}, v{b}, v{b+3}")
    for p in range(3):
        b = PAR + 6*p + 2
        a(f"v_fma_f32 v{CP+2*p}, -v{b+1}, v{b+3}, v{CP+2*p}\nv_fmac_f32 v{CP+2*p+1}, v{b+1}, v{b+2}")
    a(f"""v_max3_f32 v{MX}, abs(v{CP}), abs(v{CP+1}), abs(v{CP+2})
    v_max3_f32 v{T0}, abs(v{CP+3}), abs(v{CP+4}), abs(v{CP+5})
    v_max_f32 v{MX}, v{MX}, v{T0}""")
    zs = []
    for p in range(3): zs += [f"v_mul_f32 v{PAR+6*p}, v{PAR+6*p}, v{ZL}", f"v_mul_f32 v{PAR+6*p+1}, v{PAR+6*p+1}, v{ZR}"]
    for p in range(3): zs += [f"v_mul_f32 v{PAR+6*p+2}, 0x43800000, v{PAR+6*p}", f"v_mul_f32 v{PAR+6*p+3}, 0x43800000, v{PAR+6*p+1}",
                              f"v_mul_f32 v{PAR+6*p+4}, 0x41000000, v{PAR+6*p}", f"v_mul_f32 v{PAR+6*p+5}, 0x41000000, v{PAR+6*p+1}"]
    def z2(n=3):
        for _ in range(n):
            if zs: a(zs.pop(0))
    for r in (8, 4, 2, 1):
        z2()
        a(f"v_max_f32_dpp v{MX}, v{MX}, v{MX} row_ror:{r} row_mask:0xf bank_mask:0xf")
    a(f"v_mov_b32 v{T0}, v{MX}"); z2()
    a(f"v_permlane16_swap_b32 v{MX}, v{T0}\nv_max_f32 v{MX}, v{MX}, v{T0}\nv_mov_b32 v{T0}, v{MX}"); z2()
    a(f"""v_permlane32_swap_b32 v{MX}, v{T0}
    v_max_f32 v{MX}, v{MX}, v{T0}
    v_frexp_exp_i32_f32 v{MX}, v{MX}
    v_sub_u32 v{T0}, 5, v{MX}
    v_subrev_u32 v{MX}, 5, v{MX}""")
    for i in range(6): a(f"v_ldexp_f32 v{CP+i}, v{CP+i}, v{T0}")
    a(f"v_ldexp_f32 v{VSC}, v{VDT}, v{MX}")
    Rt = [(f"R{e}", f"R{e-top(e)}", f"u{top(e)}") for e in range(1, 8)]
    Gt = [(f"R{256*k}", f"R{256*(k-top(k))}", f"g{top(k)}") for k in range(1, 9)]
    St = [("R258", "R2", "g1"), ("R260", "R4", "g1"), ("R262", "R6", "g1"), ("R516", "R4", "g2"), ("R772", "R260", "g2")]
    Et = [(f"E{j}", f"E{j-top(j)}", f"E{top(j)}") for j in range(1, 32) if j != top(j)]
    tasks = Rt + Gt + St + Et
    names = ["R0", "E1", "E2", "E4", "E8", "E16"] + [t[0] for t in tasks]
    nm = ("u1", "u2", "u4", "g1", "g2", "g4", "g8")
    locs = [dict({x: SEED + 7*p + i for i, x in enumerate(nm)}, **{x: VAL[p] + i for i, x in enumerate(names)}) for p in range(3)]
    for p in range(3): a(f"v_cvt_pk_f16_f32 v{locs[p]['R0']}, v{CP+2*p}, -v{CP+2*p+1}")
    for p in range(3):
        b = PAR + 6*p
        chains(a, o, [(160, b, b+1, [locs[p][x] for x in nm[:3]], True), (166, b+2, b+3, [locs[p][x] for x in nm[3:]], True),
                      (172, b+4, b+5, [locs[p][x] for x in names[1:6]], False)])
    items = [t for p in range(3) for t in products(tasks, locs[p])]
    mix(a.lines + items[:o.npre], 99)
    items = items[o.npre:]
    a = main
    stamp(a, o, 2)
    a("h_g1:")
    def kmf(p): return [f"v_mfma_f32_32x32x16_f16 v[{DA}:{DA+15}], v[{FA+4*k}:{FA+4*k+3}], v[{FB+4*k}:{FB+4*k+3}], {'0' if p == 0 and k == 0 else f'v[{DA}:{DA+15}]'}" for k in range(8)]
    krd = []
    for k in range(8): krd += [f"ds_read_b128 v[{FA+4*k}:{FA+4*k+3}], v{VRA} offset:{32*272 + 32*k}", f"ds_read_b128 v[{FB+4*k}:{FB+4*k+3}], v{VRB} offset:{32*k}"]
    kwr = lambda p: [f"ds_write_addtid_b32 v{locs[p][x]} offset:{tab_off(x)}" for x in names]
    work = {}
    per = -(-len(items)//o.tw_at)
    for k in range(o.tw_at): work[k] = items[k*per:(k+1)*per]
    w0 = [f"s_mov_b32 m0, s{KGB}\nv_mov_b32 v{T0}, 0x3c00\nv_add_u32 v{T1}, v{VCN}, v{VL16}\nds_write_addtid_b32 v{T0}",
          f"s_mov_b64 exec, 15\nds_write_b128 v{T1}, v[{ZQ}:{ZQ+3}]\ns_mov_b64 exec, -1"] + kwr(0)
    if o.tw_at < 20:
        per = -(-len(w0)//(20 - o.tw_at))
        for k in range(o.tw_at, 20): work[k] = w0[(k-o.tw_at)*per:(k-o.tw_at+1)*per]
        w0 = []
    vm = VM()
    for t, tag in pro[:npro]: vm.add(tag)
    queue = [(0, x) for x in pro[npro:]]
    for st_ in range(6, 20):
        if st_ % 2 == 0: queue += [(st_ - 4, x) for x in dma_x(st_//2)]
        queue += [(st_ - 5, x) for x in dma_w(st_)]
    queue.sort(key=lambda q: q[0])
    late = [(f"buffer_load_dwordx4 v[{UR+4*m}:{UR+4*m+3}], v{VL16}, s[12:15], s66 offen offset:{1024*m} sc1", "u") for m in range(4)]
    for s in range(20):
        if o.wait and s == o.pre_chk:
            only_w0(a, lambda: poll(a, o, VPOLL, VPO, 12, 0, 16, "0xffff", name="PRE"))
        if s % 2 == 0: stamp(a, o, 1 + s//2, g1=1)
        assert vm.l.count(f"w{s}") == 3 and vm.l.count(f"x{s>>1}") == 2
        a(f"s_waitcnt vmcnt({vm.cnt(f'w{s}', f'x{s>>1}')})")
        a("s_barrier")
        if s == 0: stamp(a, o, 3)
        dm = []
        while queue and queue[0][0] <= s and len(dm) < o.cap: dm.append(queue.pop(0)[1])
        assert not dm or s < o.tw_at
        if o.wait and s == o.pre_at: dm.append((f"s_mov_b64 exec, 0xffff\nbuffer_load_dword v{VPOLL}, v{VPO}, s[12:15], 0 offen sc1\ns_mov_b64 exec, -1", "poll"))
        if s >= o.pre_chk and not queue:
            while late and len(dm) < o.cap: dm.append(late.pop(0))
        wk = work.get(s, [])
        per = -(-len(wk)//max(1, len(dm)))
        for i, (t, tag) in enumerate(dm):
            a(t); vm.add(tag)
            for x in wk[i*per:(i+1)*per]: a(x)
        if not dm:
            for x in wk: a(x)
    assert not late and not w0
    a("s_waitcnt lgkmcnt(0)\ns_barrier")
    stamp(a, o, 4)
    a(f"s_setprio {o.prio_tab}")
    a("s_cmp_lt_u32 s2, 160\ns_cbranch_scc1 h_tab")
    lds_arrive(a, 3, VCN, VONE)
    a("s_branch h_noc\nh_tab:")
    for p in range(3):
        for t in krd: a(t)
        mq = kmf(p)
        if p < 2:
            for k, t in enumerate(kwr(p+1)):
                a(t)
                if k >= 12 and k % 5 == 2: a(mq.pop(0))
        else: lds_arrive(a, 8, VCN, VONE)
        for m in mq: a(m)
    Tt = [DA+i for i in range(8)]; Q0, Q1, P0, P1, P2 = DA+8, DA+9, DA+10, DA+11, DA+12
    T8, Q0n, P0n, P1n = 120, 121, 122, 123
    AC, B0, F1, AFX, A0, DP, WF, KV = 4, 36, 68, 76, 80, [92, 116], [140, 152], 164
    EXT, W512, K0, D2W, D3W = 100, 108, 110, 111, 112
    dppm = "row_mask:0xf bank_mask:0xf"
    lds_wait4(a, o, 8, VCN, T1)
    for m in range(4): a(f"ds_write_b128 v{VUW}, v[{UR+4*m}:{UR+4*m+3}] offset:{256*m}")
    a(f"s_mov_b64 exec, 0x3fffffff\nds_write_b128 v{VUZ}, v[{ZQ}:{ZQ+3}]\ns_mov_b64 exec, -1")
    for m in range(3): a(f"ds_write_b128 v{VKZ}, v[{ZQ}:{ZQ+3}] offset:{1024*m}")
    a(f"s_mov_b64 exec, 0xff\nds_write_b128 v{VKZ}, v[{ZQ}:{ZQ+3}] offset:3072\ns_mov_b64 exec, -1")
    for i in range(13): a(f"v_mul_f32 v{DA+i}, v{DA+i}, v{VSC}")
    nb = ((T8, Tt[0], Q0), (Q0n, Q0, P0), (P0n, P0, P1), (P1n, P1, P2))
    for d, c, n in nb: a(f"v_mov_b32_dpp v{d}, v{n} wave_rol:1 {dppm}")
    for d, c, n in nb: a(f"v_mov_b32_dpp v{d}, v{c} wave_shl:1 {dppm}")
    a(f"""s_mov_b32 s64, 0
    s_mov_b32 s65, -1
    v_cvt_pk_bf16_f32 v{T0}, v{P0}, 0
    v_cndmask_b32 v{Tt[7]}, v{Tt[7]}, v{T8}, s[64:65]
    s_mov_b64 exec, 1
    v_add_f32 v{Tt[0]}, v{Tt[0]}, v{VDS}
    s_mov_b64 exec, -1
    v_readfirstlane_b32 s63, v{T0}
    v_cvt_pk_bf16_f32 v{D2W}, v{Q0n}, v{Q1}
    v_cvt_pk_bf16_f32 v{D3W}, v{P0n}, v{P0}
    v_cvt_pk_bf16_f32 v{D3W+1}, v{P1n}, v{P1}
    v_cvt_pk_bf16_f32 v{K0}, v{Tt[0]}, 0
    v_cvt_pk_bf16_f32 v{W512}, 0, v{Q0}
    v_cvt_pk_bf16_f32 v{W512+1}, v{Q0}, v{Q0}""")
    e = Tt + [T8]
    for cpy in range(2):
        for i in range(4): a(f"v_cvt_pk_bf16_f32 v{EXT+4*cpy+i}, v{e[7-2*i+cpy]}, v{e[6-2*i+cpy]}")
        a(f"ds_write_b128 v{VKW}, v[{EXT+4*cpy}:{EXT+4*cpy+3}] offset:{64+CPB*cpy}")
    a(f"""ds_write_b32 v{VD2}, v{D2W} offset:{D2O+128}
    s_mov_b32 exec_lo, 0xaaaaaaaa
    s_mov_b32 exec_hi, 0xaaaaaaaa
    ds_write_b32 v{VD3}, v{D3W} offset:{D3O+128}
    ds_write_b32 v{VD3}, v{D3W+1} offset:{D3O}
    s_mov_b64 exec, 1
    ds_write_b64 v{VKZ}, v[{W512}:{W512+1}] offset:56
    ds_write_b32 v{VKZ}, v{W512+1} offset:{CPB+60}
    ds_write_b32 v{VKZ}, v{K0} offset:{CPB+1088}
    s_mov_b64 exec, -1""")
    lds_arrive(a, 3, VCN, VONE)
    def rdA(d, s_):
        v, o0 = (VA, 16*(16-s_)) if s_ >= 8 else (VA2, 16*(8-s_))
        return [f"ds_read2_b32 v[{d}:{d+1}], v{v} offset0:{o0} offset1:{o0+1}", f"ds_read2_b32 v[{d+2}:{d+3}], v{v} offset0:{o0+2} offset1:{o0+3}"]
    rdB = lambda d, nu, rho: f"ds_read_b128 v[{d}:{d+3}], v{VB} offset:{512*nu - 64*rho + 448}"
    rdF = lambda j: f"ds_read_b128 v[{F1+4*(j&1)}:{F1+4*(j&1)+3}], v{VB} offset:{512*j + 432}"
    kv2 = lambda dn, f: KV + 8*(dn-2) + 4*f
    kv3 = lambda dn: KV + 24 + 4*(dn-4)
    for c in range(3):
        for t in rdA(A0+4*c, 8*c): a(t)
    for dn in (2, 3, 4):
        for f in range(2):
            d = kv2(dn, f)
            a(f"ds_read_b64 v[{d}:{d+1}], v{VK2} offset:{128*(4-dn) + 16*f}\nds_read_b64 v[{d+2}:{d+3}], v{VK2} offset:{128*(4-dn) + 16*f + 8}")
    for dn in range(4, 8):
        d = kv3(dn); o0 = 16*(7-dn)
        a(f"ds_read2_b32 v[{d}:{d+1}], v{VK3} offset0:{o0} offset1:{o0+1}\nds_read2_b32 v[{d+2}:{d+3}], v{VK3} offset0:{o0+2} offset1:{o0+3}")
    for t in band(AFX, 12, 13, "s63")[3:]: a(t.replace(f"v{T2}", f"v{VSH}"))
    lds_wait4(a, o, 3, VCN, T1)
    a(rdF(0))
    for nu in range(8): a(rdB(B0+4*nu, nu, 0))
    a(rdF(1))
    stamp(a, o, 5)
    if o.prio_conv != o.prio_tab: a(f"s_setprio {o.prio_conv}")
    q4 = lambda r: f"v[{r}:{r+3}]"
    def mm(d, x, y, zero=False): return f"v_mfma_f32_16x16x32_bf16 {q4(d)}, {q4(x)}, {q4(y)}, {'0' if zero else q4(d)}"
    acc = lambda n: AC + 4*n
    first = [mm(acc(n), A0, B0+4*n, True) for n in range(8)]
    d0 = [mm(acc(n), A0+4*c, B0+4*(n-c)) for c in (1, 2) for n in range(c, 8)] + [mm(acc(n), AFX, B0+4*(n-4)) for n in range(4, 8)]
    def gen(j):
        d = DP[j & 1]; f1 = F1 + 4*(j & 1); f0 = B0 + 4*j
        r = [mm(d, f1, BAND, True), mm(d+4, f0, BAND+4, True), mm(d+8, f0, BAND, True), mm(d+12, f0, BAND+8, True)]
        if j < 4: r += [mm(d+16, f1, BAND+12, True), mm(d+20, f0, BAND+16, True)]
        return r
    def cvt(j):
        d = DP[j & 1]; w = WF[j & 1]
        r = [f"v_cvt_pk_bf16_f32 v{w+2*rr+x}, v{d+8*x+rr}, v{d+8*x+4+rr}" for x in range(2) for rr in range(4)]
        if j < 4: r += [f"v_cvt_pk_bf16_f32 v{w+8+rr}, v{d+16+rr}, v{d+20+rr}" for rr in range(4)]
        return r
    def main(j):
        w = WF[j & 1]
        r = [mm(acc(j+dn), w+4*f, kv2(dn, f)) for f in range(2) for dn in (2, 3, 4) if j + dn <= 7]
        if j < 4: r += [mm(acc(j+dn), w+8, kv3(dn)) for dn in range(4, 8) if j + dn <= 7]
        return r
    seq = []; fillers = []
    mark = {}
    def put(name, l):
        mark[name] = (len(seq), len(seq) + len(l) - 1); seq.extend(l)
    put("g0", gen(0)); put("first", first); put("g1", gen(1))
    for j in range(6):
        put(f"m{j}", main(j))
        if j + 2 < 6: put(f"g{j+2}", gen(j+2))
        nfill = {2: 1, 3: 3, 4: 4}.get(j, 0)
        put(f"d{j}", d0[:nfill]); d0 = d0[nfill:]
    put("dl", d0)
    BS = [B0, DP[0]]; AS = [WF[0]+8, WF[0]]
    for rho in range(1, 8):
        put(f"r{rho}", [mm(acc(n), AS[rho & 1]+4*c, BS[rho & 1]+4*(n-c)) for c in (0, 1) for n in range(c, 8)])
    for j in range(6):
        lo = mark[f"g{j}"][1] + 2
        if j >= 2: lo = max(lo, mark[f"m{j-2}"][1])
        fillers += [(lo, mark[f"m{j}"][0] - 2, t, f"c{j}") for t in cvt(j)]
        if j + 2 < 6: fillers.append((mark[f"g{j}"][1], mark[f"g{j+2}"][0] - 4, rdF(j+2), None))
    for rho in range(1, 8):
        hi = mark[f"r{rho}"][0] - 1
        for nu in range(8):
            if rho == 1: lo = mark["m4"][0] if nu < 6 else mark["m5"][0]
            elif rho == 2: lo = mark["dl"][1]
            else: lo = mark[f"r{rho-2}"][1]
            fillers.append((lo, hi + nu, rdB(BS[rho & 1]+4*nu, nu, rho), None))
            if nu in (0, 3):
                c = 0 if nu == 0 else 1
                la = mark["m4"][1] if rho == 1 else lo
                fillers += [(la, hi + 8*c, t, None) for t in rdA(AS[rho & 1]+4*c, 8*c + rho)]
    for i, m in enumerate(seq):
        a(m)
        ready = sorted([f for f in fillers if f[0] <= i], key=lambda f: f[1])
        for f in ready[:2]:
            assert f[1] >= i, (f, i)
            a(f[2]); fillers.remove(f)
    assert not fillers and len(seq) == 202
    a(f"""v_lshrrev_b32 v{T0}, 2, v{VQ}
    v_and_b32 v{T1}, 3, v0
    v_lshlrev_b32 v{T0}, 7, v{T0}
    v_and_b32 v{T2}, 1, v{VG}
    v_lshl_add_u32 v{T0}, v{T1}, 4, v{T0}
    v_lshl_add_u32 v{T0}, v{VHI}, 6, v{T0}
    s_lshl_b32 s60, s{CH}, 12
    s_add_u32 s60, s60, {hx(YT)}
    v_lshl_add_u32 v{T0}, v{T2}, 9, v{T0}""")
    for m in range(4):
        ob = 36 + 4*m
        for i in range(4): a(f"v_cvt_pk_bf16_f32 v{ob+i}, v{AC+8*m+2*i}, v{AC+8*m+2*i+1}")
        a(f"v_permlane16_swap_b32 v{ob}, v{ob+2}\nv_permlane16_swap_b32 v{ob+1}, v{ob+3}")
        a(f"buffer_store_dwordx4 v[{ob}:{ob+3}], v{T0}, s[12:15], s60 offen offset:{1024*m} sc1")
    a("h_noc:")
    stamp(a, o, 6)
    VOX, VBO, VIR, VIR2, VYR, VYD, VYT, VYW, VFL = 60, 61, 62, 63, 64, 65, 68, 69, 70
    XV, BV, YV, BASE, PR = 72, 88, 92, 108, [140, 172]
    a(f"""v_min_u32 v{T0}, 39, v0
    s_lshl_b32 s61, s{RB}, 6
    v_mul_u32_u24 v{T1}, 6554, v{T0}
    s_lshl2_add_u32 s61, s{W}, s61
    v_lshrrev_b32 v{T1}, 16, v{T1}
    s_mul_i32 s61, s61, 1280
    v_mul_u32_u24 v{T2}, 10, v{T1}
    s_mul_i32 s62, s{CB}, 160
    v_sub_u32 v{T0}, v{T0}, v{T2}
    s_add_u32 s61, s61, s62
    v_lshlrev_b32 v{VBO}, 4, v{T0}
    v_mul_u32_u24 v{T2}, 1280, v{T1}
    v_add3_u32 v{VOX}, v{T2}, v{VBO}, s61""")
    for t in range(4): a(f"s_mov_b32 s{32+t}, {t*16*1280}")
    a("s_mov_b32 exec_hi, 0xff")
    for t in range(4): a(f"buffer_load_dwordx4 v[{XV+4*t}:{XV+4*t+3}], v{VOX}, s[4:7], s{32+t} offen")
    a(f"buffer_load_dwordx4 v[{BV}:{BV+3}], v{VBO}, s[24:27], s62 offen\ns_mov_b32 exec_hi, -1")
    a(f"""s_mul_i32 s63, s{W}, {4*336}
    s_add_u32 s63, s63, {RING}
    s_mul_i32 s64, s{W}, {4*176}
    s_add_u32 s64, s64, {UB}
    v_mul_u32_u24 v{T2}, 176, v{T1}
    v_add3_u32 v{VYR}, v{T2}, v{VBO}, s64
    v_mul_u32_u24 v{T2}, 336, v{T1}
    v_lshl_add_u32 v{T2}, v{T0}, 5, v{T2}
    v_add_u32 v{VIR}, s63, v{T2}
    v_add_u32 v{VIR2}, {2*REG}, v{VIR}
    v_lshlrev_b32 v{VFL}, 7, v0
    s_mul_i32 s65, s2, 205
    s_lshr_b32 s65, s65, 10
    s_mul_i32 s60, s65, 5
    s_sub_u32 s60, s2, s60
    s_lshl_b32 s65, s65, 12
    s_lshl2_add_u32 s65, s60, s65
    s_add_u32 s65, s65, {hx(FL_YP)}
    s_waitcnt vmcnt(5)""")
    lds_arrive(a, 1, VCN, VONE, rtn=T1)
    if o.wait:
        SK = a.lab("ys")
        a(f"""s_cbranch_scc0 {SK}
        s_cmp_ge_u32 s2, 160
        s_cbranch_scc1 {SK}
        s_mov_b32 exec_hi, 0
        buffer_store_dword v{VONE}, v{VFL}, s[12:15], s65 offen sc1
        s_mov_b64 exec, -1
        {SK}:""")
    a(f"s_setprio {o.prio_fin}")
    a(f"""v_lshrrev_b32 v{T0}, 3, v0
    v_mul_u32_u24 v{T0}, {4096-128}, v{T0}
    v_add_u32 v{VYD}, v{T0}, v{VL16}
    v_add_u32 v{VYD+1}, 0x8000, v{VYD}
    v_add_u32 v{VYD+2}, 0x10000, v{VYD}
    v_lshrrev_b32 v{T0}, 2, v{VQ}
    v_and_b32 v{T1}, 2, v0
    v_lshlrev_b32 v{T0}, 7, v{T0}
    v_and_b32 v{T2}, 1, v0
    v_lshl_add_u32 v{T0}, v{T1}, 5, v{T0}
    v_lshl_add_u32 v{T0}, v{VG}, 4, v{T0}
    v_lshl_add_u32 v{T0}, v{T2}, 3, v{T0}
    v_add_u32 v{VYT}, s{KEB}, v{T0}
    s_mul_i32 s60, s{W}, 40
    s_add_u32 s60, s60, {UB}
    v_mul_u32_u24 v{T0}, 176, v0
    v_add_u32 v{VYW}, s60, v{T0}
    s_mul_i32 s60, s{CB}, 80
    s_mul_i32 s61, s{W}, 20
    s_add_u32 s60, s60, s61
    s_lshl_b32 s60, s60, 12
    s_lshl_b32 s61, s{RB}, 7
    s_add_u32 s60, s60, s61
    s_add_u32 s65, s60, {hx(YT)}
    s_lshl2_add_u32 s66, s{CB}, s{W}
    s_lshl_b32 s66, s66, 5
    s_add_u32 s66, s66, s{RB}
    s_lshl_b32 s66, s66, 7
    s_add_u32 s66, s66, {hx(FL_YP)}""")
    BF = PR[0]
    for i in range(4): a(f"v_lshlrev_b32 v{BF+2*i}, 16, v{BV+i}\nv_and_b32 v{BF+2*i+1}, 0xffff0000, v{BV+i}")
    for i in range(16): a(f"v_lshlrev_b32 v{BASE+2*i}, 16, v{XV+i}\nv_and_b32 v{BASE+2*i+1}, 0xffff0000, v{XV+i}")
    for i in range(32): a(f"v_add_f32 v{BASE+i}, v{BASE+i}, v{BF+(i & 7)}")
    lds_wait4(a, o, 1, VCN, T1)
    spoll(a, o, "s_load_dwordx8 s[40:47], s[12:13], s66 glc", "s_and_b64 s[40:41], s[40:41], s[42:43]\ns_and_b32 s40, s40, s41\ns_and_b32 s40, s40, s44\ns_cmp_eq_u32 s40, 1", "YF", o.ysleep)
    stamp(a, o, 7)
    for q in range(3):
        if q == 2: a("s_mov_b32 exec_hi, 0")
        a(f"s_add_u32 m0, s{KEB}, {1024*q}\nbuffer_load_dwordx4 v{VYD+q}, s[12:15], s65 offen sc1 lds")
    a("s_mov_b32 exec_hi, -1\ns_waitcnt vmcnt(0)")
    for m in range(5): a(f"ds_read_b64_tr_b16 v[{XV+2*m}:{XV+2*m+1}], v{VYT} offset:{512*m}")
    for m in range(5): a(f"ds_write_b64 v{VYW}, v[{XV+2*m}:{XV+2*m+1}] offset:{8*m}")
    lds_arrive(a, 2, VCN, VONE)
    lds_wait4(a, o, 2, VCN, T1)
    for t in range(4): a(f"ds_read_b128 v[{YV+4*t}:{YV+4*t+3}], v{VYR} offset:{t*16*176}")
    stamp(a, o, 8)
    def addy(t):
        for i in range(4*t, 4*t+4):
            a(f"""v_lshlrev_b32 v{XV+12}, 16, v{YV+i}
            v_and_b32 v{XV+13}, 0xffff0000, v{YV+i}
            v_add_f32 v{BASE+2*i}, v{BASE+2*i}, v{XV+12}
            v_add_f32 v{BASE+2*i+1}, v{BASE+2*i+1}, v{XV+13}""")
    for t in range(4):
        if t == 0: addy(0)
        lds_wait4(a, o, 4 + t, VCN, T1)
        if t == 3: stamp(a, o, 9)
        pr = PR[t & 1]
        for w_ in range(4):
            for h in range(2):
                r = pr + 8*w_ + 4*h
                a(f"ds_read_b128 v[{r}:{r+3}], v{VIR if w_ < 2 else VIR2} offset:{(w_ & 1)*REG + t*16*336 + 16*h}")
        if t < 3: addy(t + 1)
        b = BASE + 8*t
        for w_ in range(4):
            if t == 3:
                for e in range(4): a(f"v_pk_add_f32 v[{b+2*e}:{b+2*e+1}], v[{b+2*e}:{b+2*e+1}], v[{pr+8*w_+2*e}:{pr+8*w_+2*e+1}]")
            else:
                for e in range(8): a(f"v_add_f32 v{b+e}, v{b+e}, v{pr+8*w_+e}")
        ob = XV + 4*(t & 1)
        for e in range(4): a(f"v_cvt_pk_bf16_f32 v{ob+e}, v{b+2*e}, v{b+2*e+1}")
        a(f"s_mov_b32 exec_hi, 0xff\nbuffer_store_dwordx4 v[{ob}:{ob+3}], v{VOX}, s[16:19], s{32+t} offen {o.out_flags}\ns_mov_b32 exec_hi, -1")
    if o.prof:
        a("s_waitcnt vmcnt(0)")
        stamp(a, o, 10)
        stamp_flush(a, o, 11, 4, T1)
    a("s_endpgm")

HEADER = open("cdna_kernels/" + NAME + ".s.ref").read().split("; Override launch")[0]

def build(o):
    a = Asm()
    k = NAME + "_kernel"
    a(f"{k}:")
    entry(a, o)
    role_h(a, o)
    role_c(a, o)
    a("k_end:\ns_endpgm")
    body = a.finish([k], verbose=True)
    return f"""{HEADER}; @launch grid=(256,1,1) block=(512,1,1) lds={LDS_BYTES}
.amdgcn_target "amdgcn-amd-amdhsa--gfx950"
.text
.globl {k}
.p2align 8
.type {k},@function
{body}
.section .rodata,"a"
.p2align 6
.amdhsa_kernel {k}
  .amdhsa_next_free_vgpr 256
  .amdhsa_next_free_sgpr 102
  .amdhsa_accum_offset 256
  .amdhsa_group_segment_fixed_size 0
  .amdhsa_kernarg_size 136
  .amdhsa_user_sgpr_count 2
  .amdhsa_user_sgpr_kernarg_segment_ptr 1
  .amdhsa_system_sgpr_workgroup_id_x 1
.end_amdhsa_kernel
"""

if __name__ == "__main__":
    o = Opt()
    out = sys.argv[1]
    for kv in sys.argv[2:]:
        k, v = kv.split("=")
        cur = getattr(o, k)
        setattr(o, k, v.replace("_", " ") if isinstance(cur, str) else (bool(int(v)) if isinstance(cur, bool) else int(v)))
    open(out, "w").write(build(o))
```

```python
import sys, math, struct
from asmlib import Asm

NAME = "parallel_sum__ssm_conv_s4__mixer_channel_mlp__prompt"
T, D, F, NM = 2048, 640, 1536, 192
FL_PRE, FL_Y, STATS = 0x0, 0x1000, 0x8000
FL_H, FL_YP = 0xD40000, 0xD60000
XN, YT, W2F, HH, PROFO, WS_END = 0x10000, 0x290000, 0x510000, 0x700000, 0xD00000, 0xD80000
OOB = "0x7ff00000"
KE, UB, UP = 4096, 4*4096, 4576
CPB, D3O, D2O = 1216, 2368, 2688
CNT = 3584
MID = UB + 4*UP
W2T, PARB, LNI = 40960, MID, 8192
KG, KGO = 15232, MID
SLA = MID
WBASE = 65536
WSL = [WBASE + ((i - 2) % 6)*12288 for i in range(6)]
XSL = [WBASE + 73728 + i*8192 for i in range(3)]
RING, REG = 77824, 21504
LDS_BYTES = 163840

def fbits(x): return struct.unpack("<I", struct.pack("<f", x))[0]
def hx(x): return f"0x{x & 0xffffffff:x}"

class Opt:
    wait = True; prof = 0; spin = 200000; sleep = 4
    ra = 5; rb = 5; rc = 1; rm = 10; rk = 1
    rot2 = 1
    pw = 4; ipre = 64; hpre = 150; capc = 5; hw0 = 36; nw0 = 6; kpk = False
    pre_at = 14; pre_c = 16; a_w = 3; bc_at = 1; a_late = False; b0late = False; a_dma = False; a_rest = 10; stouch = False; tw_at = 17; tw_n = 15; early3 = False
    ysleep = 8; hsleep = 2; lsleep = 1
    g1p = 0; x_nocs = False; h_flags = "sc1"
    n2 = 20; hrot = 0; htouch = False; hlead = 10; blk = 7
    g1_ld = 3; gelu_ld = 1; n1 = 5; gelu_pk = 9; dpos = 2; fin = 1; base0 = False
    code_pf = True; code_bytes = 16384
    out_flags = "sc1"; par_flags = ""; sm_flags = ""
    prio_c = 0; prio_h = 0; prio_tab = 3; prio_conv = 3; prio_g2 = 0; prio_fin = 0

class VM:
    def __init__(self): self.l = []
    def add(self, tag, n=1): self.l += [tag]*n
    def has(self, *tags): return any(t in tags for t in self.l)
    def cnt(self, *tags):
        last = max(i for i, t in enumerate(self.l) if t in tags)
        return len(self.l) - 1 - last

W, RB, CB, RBL, CBL, KX, KW, XB, WB, CH, KGB, UBW, TB = 3, 48, 49, 50, 51, 52, 53, 54, 55, 56, 57, 58, 59
HO, WO, WGR, HGR = 32, 36, 40, 44
VXO, VWO = 1, 3
VG, VQ, T0, T1, T2, VPOLL = 250, 251, 252, 253, 254, 255
VL16, VL16B = 248, 249

def stamp(a, o, idx, base=80, g1=0):
    if o.prof and (o.g1p == g1 or idx == 0):
        a(f"{'s_memrealtime' if o.prof == 1 else 's_memtime'} s[{base+2*idx}:{base+2*idx+1}]")

def stamp_flush(a, o, n, woff, vt, base=80):
    if not o.prof: return
    a("s_waitcnt lgkmcnt(0)")
    a(f"s_lshl_b32 s78, s2, 3\ns_add_u32 s78, s78, s{W}\ns_add_u32 s78, s78, {woff}\ns_lshl_b32 s78, s78, 6\ns_add_u32 s78, s78, {hx(PROFO)}")
    for i in range(n):
        a(f"v_mov_b32 v{vt}, s{base+2*i}\nbuffer_store_dword v{vt}, off, s[12:15], s78 offset:{4*i}")

def spoll(a, o, loads, check, name, sleep, pre=False):
    if not o.wait: return
    L = a.lab(name); X = a.lab(name + "x")
    a(f"s_mov_b32 s76, 0\ns_branch {L}f\n{L}:")
    if sleep: a(f"s_sleep {sleep}")
    a(f"s_add_u32 s76, s76, 1\ns_cmp_gt_u32 s76, {o.spin}\ns_cbranch_scc1 {X}")
    if not pre: a(f"{L}f:")
    a(loads)
    if pre: a(f"{L}f:")
    a("s_waitcnt lgkmcnt(0)"); a(check)
    a(f"s_cbranch_scc0 {L}\n{X}:")

def poll(a, o, vdst, voff, srd, soff, expect, mask, name="P"):
    if not o.wait: return
    L = a.lab(name); X = a.lab(name + "x"); C = a.lab(name + "c")
    a(f"s_mov_b64 exec, {mask}\ns_mov_b32 s76, 0\ns_branch {C}\n{L}:\ns_sleep {o.sleep}")
    ad = f"v{voff}, s[{srd}:{srd+3}], {soff} offen" if voff is not None else f"off, s[{srd}:{srd+3}], {soff}"
    a(f"buffer_load_dword v{vdst}, {ad} sc1\ns_waitcnt vmcnt(0)\n{C}:")
    a(f"v_cmp_ne_u32 vcc, {expect}, v{vdst}")
    a(f"s_add_u32 s76, s76, 1\ns_cmp_gt_u32 s76, {o.spin}\ns_cbranch_scc1 {X}")
    a(f"s_cbranch_vccnz {L}\n{X}:\ns_mov_b64 exec, -1")


def only_w0(a, fn):
    SK = a.lab("w0")
    a(f"s_cmp_lg_u32 s{W}, 0\ns_cbranch_scc1 {SK}")
    fn()
    a(f"{SK}:")

def add_one(a, sreg, vt):
    a(f"v_mov_b32 v{vt}, 1\ns_mov_b64 exec, 1\nbuffer_atomic_add v{vt}, off, s[12:15], s{sreg} sc1\ns_mov_b64 exec, -1")

def lds_arrive(a, cnt, va, vone, rtn=None):
    a("s_mov_b64 exec, 1")
    if rtn is not None: a(f"ds_add_rtn_u32 v{rtn}, v{va}, v{vone} offset:{4*cnt}\ns_waitcnt lgkmcnt(0)\nv_readfirstlane_b32 s60, v{rtn}\ns_mov_b64 exec, -1\ns_cmp_eq_u32 s60, 3")
    else: a(f"ds_add_u32 v{va}, v{vone} offset:{4*cnt}\ns_mov_b64 exec, -1")

def lds_wait4(a, o, cnt, va, vb):
    L = a.lab("lw"); X = a.lab("lx")
    a(f"""s_mov_b32 s76, 0
    s_branch {L}f
    {L}:
    s_sleep {o.lsleep}
    s_add_u32 s76, s76, 1
    s_cmp_gt_u32 s76, {o.spin*8}
    s_cbranch_scc1 {X}
    {L}f:
    ds_read_b32 v{vb}, v{va} offset:{4*cnt}
    s_waitcnt lgkmcnt(0)
    v_readfirstlane_b32 s60, v{vb}
    s_cmp_lt_u32 s60, 4
    s_cbranch_scc1 {L}
    {X}:""")

def weave(a, vm, mf, spread, early, cap=2):
    n = len(mf)
    if not n:
        for t, tag in early + spread:
            a(t)
            if tag and vm: vm.add(tag)
        return
    slots = [[] for _ in range(n)]
    for i, (t, tag) in enumerate(spread):
        p = min(n - 1, 1 + (i*(n-1))//len(spread))
        l = t.split("\n")
        if l[0].startswith("s_add_u32 m0") and (n-1)//len(spread) >= 2:
            slots[p-1].append((l[0], None)); l = l[1:]
        slots[p].append(("\n".join(l), tag))
    k = 0
    cnt = lambda sl: sum(len(t.split("\n")) for t, _ in sl)
    for it in early:
        while k < n - 1 and cnt(slots[k]) >= cap: k += 1
        slots[k].append(it)
    for i in range(n):
        a(mf[i])
        for t, tag in slots[i]:
            a(t)
            if tag and vm: vm.add(tag)

def dma_x(j):
    g = []
    for n in range(2):
        t = f"s_add_u32 m0, s{XB}, {XSL[j%3] + n*1024}\nbuffer_load_dwordx4 v{VXO+n}, s[4:7], s{KX} offen lds"
        if n == 1: t += f"\ns_add_u32 s{KX}, s{KX}, 128\ns_cmp_eq_u32 s{KX}, 1280\ns_cselect_b32 s{KX}, 0, s{KX}"
        g.append((t, f"x{j}"))
    return g
def dma_w(s):
    g = []
    for n in range(3):
        t = f"s_add_u32 m0, s{WB}, {WSL[s%6] + n*(1024-128)}\nbuffer_load_dwordx4 v{VWO}, s[8:11], s{KW} offen offset:{128*n} lds"
        if n == 2: t += f"\ns_add_u32 s{KW}, s{KW}, 98304" + (f"\ns_cmp_eq_u32 s{KW}, {20*98304}\ns_cselect_b32 s{KW}, 0, s{KW}" if s & 1 else "")
        g.append((t, f"w{s}"))
    return g

def w2_off(i): return f"s_add_u32 s69, s{WGR + (i >> 2)}, s{WO + (i & 3)}\n"
def w2_lds(i, sbase, off):
    r = []
    for dt in range(5):
        if dt == 0: r.append(w2_off(i) + f"s_add_u32 m0, s{sbase}, {off}\nbuffer_load_dwordx4 v{VL16}, s[12:15], s69 offen sc1 lds")
        elif dt < 4: r.append(f"buffer_load_dwordx4 v{VL16}, s[12:15], s69 offen offset:{dt*1024} sc1 lds")
        else: r.append(f"s_add_u32 m0, s{sbase}, {off+4096}\nbuffer_load_dwordx4 v{VL16B}, s[12:15], s69 offen sc1 lds")
    return r

def phase2_scalars(o, with_h=True):
    r = f"""s_mul_i32 s60, s{CB}, {48*5120}
    s_mul_i32 s61, s{W}, {12*5120}
    s_add_u32 s60, s60, s61
    s_add_u32 s60, s60, {hx(W2F)}
    s_mul_i32 s63, s{RB}, {48*4096}
    s_mul_i32 s61, s{W}, {12*4096}
    s_add_u32 s63, s63, s61
    s_add_u32 s63, s63, {hx(HH)}
    s_mul_i32 s62, s{RBL}, {2*o.rot2}
    s_lshr_b32 s62, {hx(sum((k % 3) << (2*k) for k in range(12)))}, s62""".split("\n")
    for g in range(3):
        r += [f"s_bfe_u32 s61, s62, {hx(0x20000 + 2*g)}", f"s_mul_i32 s64, s61, {4*5120}", f"s_add_u32 s{WGR+g}, s64, s60"]
        if with_h: r += [f"s_lshl_b32 s64, s61, 14", f"s_add_u32 s{HGR+g}, s64, s63"]
    r += [f"s_and_b32 s62, s{CBL}, {o.hrot}"]
    for j in range(4):
        r += [f"s_xor_b32 s61, s62, {j}", f"s_mul_i32 s{WO+j}, s61, 5120"]
        if with_h: r += [f"s_lshl_b32 s{HO+j}, s61, 12"]
    r += f"""s_mul_i32 s67, s{W}, 10240
    s_add_u32 s67, s67, {SLA}
    s_mul_i32 s68, s{W}, {REG}
    s_add_u32 s68, s68, {RING}""".split("\n")
    return "\n".join(r)

def w2_slot(i):
    return w2_lds(i, 67, (i-6)*5120) if i < 8 else w2_lds(i, 68, (i-8)*5120)

AROW = {0:0, 1:1, 2:2, 3:3, 4:8, 5:9, 6:10, 7:11, 256:4, 258:6, 260:12, 262:14, 512:16, 516:17, 1024:18, 1536:19,
        768:20, 772:21, 1280:22, 1792:23, 2048:13}
top = lambda x: 1 << (x.bit_length() - 1)

def bf16_sload(a, sd, sp):
    a(f"s_load_dword s{sd}, s[{sp}:{sp+1}], s76")
def bf16_pick(a, sd):
    a(f"s_lshl_b32 s76, s{sd}, 16\ns_and_b32 s{sd}, s{sd}, 0xffff0000\ns_bitcmp1_b32 s{CH}, 0\ns_cselect_b32 s{sd}, s{sd}, s76")

def dt_setup(a, vdt, sd):
    bf16_pick(a, sd)
    a(f"""v_mov_b32 v{vdt}, {hx(fbits(math.log2(math.e)))}
    v_mul_f32 v{vdt}, s{sd}, v{vdt}
    v_exp_f32 v{vdt}, v{vdt}
    v_cvt_pk_bf16_f32 v{vdt}, v{vdt}, v{vdt}
    v_and_b32 v{vdt}, 0xffff0000, v{vdt}""")

def tab_off(nm): return KGO + ((32 + AROW[int(nm[1:])])*272 if nm[0] == "R" else int(nm[1:])*272)

def products(tasks, loc):
    r = []
    for pi in range(0, len(tasks), 2):
        pr = tasks[pi:pi+2]
        assert len(pr) == 2 and pr[1][1] != pr[0][0] and pr[1][2] != pr[0][0]
        r += [f"v_pk_mul_f16 v{loc[t[0]]}, v{loc[t[1]]}, v{loc[t[2]]} op_sel_hi:[1,0]" for t in pr]
        r += [f"v_pk_fma_f16 v{loc[t[0]]}, v{loc[t[1]]}, v{loc[t[2]]}, v{loc[t[0]]} op_sel:[1,1,0] op_sel_hi:[0,1,1] neg_lo:[1,0,0]" for t in pr]
    return r

def chains(a, o, chs):
    cp = lambda r: f"v[{r}:{r+1}]"
    for c, zr, zi, d, conj in chs: a(f"v_fract_f32 v{c+5}, v{zi}\nv_exp_f32 v{c+4}, v{zr}")
    for c, zr, zi, d, conj in chs: a(f"v_cos_f32 v{c}, v{c+5}\nv_sin_f32 v{c+1}, v{c+5}")
    for c, zr, zi, d, conj in chs:
        if o.kpk: a(f"v_pk_mul_f32 {cp(c)}, {cp(c)}, {cp(c+4)} op_sel_hi:[1,0]")
        else: a(f"v_mul_f32 v{c}, v{c}, v{c+4}\nv_mul_f32 v{c+1}, v{c+1}, v{c+4}")
    for lvl in range(max(len(x[3]) for x in chs)):
        act = [x for x in chs if lvl < len(x[3])]; sq = [x for x in chs if lvl + 1 < len(x[3])]
        cur = lambda x: x[0] + 2*(lvl & 1)
        oth = lambda x: x[0] + 2*((lvl+1) & 1)
        for x in sq:
            if o.kpk: a(f"v_pk_mul_f32 {cp(oth(x))}, {cp(cur(x))}, {cp(cur(x))} op_sel_hi:[1,0]")
            else: a(f"v_add_f32 v{x[0]+5}, v{cur(x)}, v{cur(x)}\nv_mul_f32 v{x[0]+4}, v{cur(x)+1}, v{cur(x)+1}")
        for x in act: a(f"v_cvt_pk_f16_f32 v{x[3][lvl]}, v{cur(x)}, {'-' if x[4] else ''}v{cur(x)+1}")
        for x in sq:
            if o.kpk: a(f"v_pk_fma_f32 {cp(oth(x))}, {cp(cur(x))}, {cp(cur(x))}, {cp(oth(x))} op_sel:[1,1,0] op_sel_hi:[0,1,1] neg_lo:[1,0,0]")
            else: a(f"v_fma_f32 v{oth(x)}, v{cur(x)}, v{cur(x)}, -v{x[0]+4}\nv_mul_f32 v{oth(x)+1}, v{x[0]+5}, v{cur(x)+1}")

def srd(a, d, size): a(f"s_mov_b32 s{d+2}, {hx(size)}\ns_mov_b32 s{d+3}, 0x20000")

def entry(a, o):
    a("s_cmp_ge_u32 s2, 256\ns_cbranch_scc1 k_end")
    stamp(a, o, 0)
    a("""s_load_dwordx2 s[4:5], s[0:1], 0
    s_load_dwordx16 s[32:47], s[0:1], 8
    s_load_dwordx2 s[8:9], s[0:1], 80
    s_load_dwordx2 s[16:17], s[0:1], 96
    s_load_dwordx2 s[12:13], s[0:1], 128""")
    if o.code_pf:
        a(f"""s_getpc_b64 s[74:75]
        s_bfe_u32 s60, s2, 0x30003
        v_lshrrev_b32 v2, 4, v0
        v_lshl_add_u32 v2, v2, 3, s60
        v_lshlrev_b32 v2, 7, v2
        v_min_u32 v2, {hx(o.code_bytes-4)}, v2
        global_load_dword v231, v2, s[74:75]""")
    a(f"""v_lshrrev_b32 v1, 6, v0
    v_and_b32 v0, 63, v0
    v_readfirstlane_b32 s77, v1
    v_lshlrev_b32 v{VL16}, 4, v0
    v_lshrrev_b32 v{VG}, 4, v0
    v_and_b32 v{VQ}, 15, v0
    s_lshr_b32 s{RBL}, s2, 5
    s_bfe_u32 s{CBL}, s2, 0x20003
    s_bfe_u32 s{RB}, s2, 0x20001
    s_lshl3_add_u32 s{RB}, s{RB}, s{RBL}
    s_and_b32 s{CB}, s2, 1
    s_lshl2_add_u32 s{CB}, s{CB}, s{CBL}
    s_and_b32 s{W}, s77, 3
    s_cmp_ge_u32 s2, 160
    s_cbranch_scc1 role_a
    s_cmp_lt_u32 s77, 4
    s_cbranch_scc1 role_c""")

def ring_offsets(a, o):
    a(f"""v_lshrrev_b32 v{T0}, 3, v0
    v_and_b32 v{T1}, 7, v0
    s_lshl2_add_u32 s60, s{RB}, s{W}
    s_mul_i32 s60, s60, {16*1280}
    v_mul_u32_u24 v{T2}, 1280, v{T0}
    v_xor_b32 v4, v{T1}, v{VG}
    s_and_b32 s61, s{W}, 1
    s_lshl_b32 s61, s61, 2
    v_lshl_add_u32 v{T2}, v4, 4, v{T2}
    v_and_or_b32 v4, v{T0}, 2, s61
    v_add_u32 v{VXO}, s60, v{T2}
    v_xor_b32 v{T1}, v{T1}, v4
    s_lshl_b32 s60, s{W}, 6
    s_add_u32 s60, s60, s{CB}
    s_mul_i32 s60, s60, 384
    v_mul_u32_u24 v{T0}, 3072, v{T0}
    v_xor_b32 v{VXO+1}, 64, v{VXO}
    v_lshl_add_u32 v{T0}, v{T1}, 4, v{T0}
    v_add_u32 v{VXO+1}, {8*1280}, v{VXO+1}
    v_add_u32 v{VWO}, s60, v{T0}""")
    if o.ra == o.rb: a(f"s_add_u32 s60, s{RBL}, s{CBL}\ns_mul_i32 s60, s60, {o.ra}")
    else: a(f"s_mul_i32 s60, s{RBL}, {o.ra}\ns_mul_i32 s61, s{CBL}, {o.rb}\ns_add_u32 s60, s60, s61")
    if o.rc: a(f"s_and_b32 s61, s2, 7\n" + (f"s_mul_i32 s61, s61, {o.rc}\n" if o.rc != 1 else "") + "s_add_u32 s60, s60, s61")
    a(f"""s_mul_i32 s61, s60, {65536//o.rm + 1}
    s_lshr_b32 s61, s61, 16
    s_mul_i32 s61, s61, {o.rm}
    s_sub_u32 s60, s60, s61
    s_mul_i32 s{KX}, s60, {128*o.rk}
    s_mul_i32 s{KW}, s60, {2*98304*o.rk}
    s_lshl_b32 s{XB}, s{W}, 11
    s_mul_i32 s{WB}, s{W}, 3072""")

def role_c(a, o):
    ACC, CS, FR, B1R, VXR, WREG = 4, 52, [64, 92], 120, 126, 128
    ST, VWR, ONES = 232, 241, 244
    a(".p2align 6\nrole_c:")
    ring_offsets(a, o)
    srd(a, 4, T*D*2); srd(a, 8, D*F*2)
    a("s_cmp_ge_u32 s2, 160\ns_cbranch_scc1 c_nob\ns_barrier\nc_nob:")
    su = f"""s_load_dwordx2 s[20:21], s[0:1], 88
    s_mov_b32 s14, {hx(WS_END)}
    s_mov_b32 s15, 0x20000
    s_mov_b32 s22, {F*2}
    s_mov_b32 s23, 0x20000
    v_lshrrev_b32 v{T0}, 1, v{VQ}
    v_xor_b32 v{T0}, v{T0}, v{VG}
    v_lshlrev_b32 v{T0}, 4, v{T0}
    v_lshl_add_u32 v{T0}, v{VQ}, 7, v{T0}
    v_add_u32 v{VXR}, {XSL[0]}, v{T0}
    v_xor_b32 v{VXR+1}, 64, v{VXR}
    v_lshrrev_b32 v{T0}, 2, v{VQ}
    v_and_b32 v{T2}, 3, v0
    v_mul_u32_u24 v{T1}, 3072, v{VG}
    v_lshl_add_u32 v{T1}, v{T0}, 7, v{T1}
    v_lshl_add_u32 v{T1}, v{T2}, 3, v{T1}
    v_lshrrev_b32 v{T0}, 1, v{T0}
    v_and_b32 v{T2}, 1, v{VG}
    v_lshl_or_b32 v{T0}, v{T2}, 1, v{T0}
    s_mul_i32 s60, s{W}, 3""".split("\n")
    for n in range(3):
        su += f"""s_add_u32 s61, s60, {n}
        s_lshr_b32 s66, s61, 2
        s_lshl_b32 s66, s66, 10
        s_add_u32 s66, s66, {WBASE}
        s_and_b32 s61, s61, 3
        v_xor_b32 v{T2}, s61, v{T0}
        v_lshl_add_u32 v{T2}, v{T2}, 5, v{T1}
        v_add_u32 v{VWR+n}, s66, v{T2}""".split("\n")
    su += [f"v_mov_b32 v{ONES+i}, 0x3f803f80" for i in range(4)] + [f"v_add_u32 v{VL16B}, 4096, v{VL16}"]
    su += (phase2_scalars(o) + f"""
    s_mul_i32 s65, s{CB}, 384
    s_mul_i32 s61, s{W}, 96
    s_add_u32 s65, s65, s61
    v_lshlrev_b32 v{T2}, 3, v{VG}
    s_lshl_b32 s66, s{RB}, 9
    s_add_u32 s66, s66, {hx(STATS)}
    v_lshlrev_b32 v{T0}, 3, v{VQ}
    s_lshl3_add_u32 s60, s{RB}, s{CB}
    s_lshl2_add_u32 s60, s60, s{W}
    s_lshl_b32 s60, s60, 7
    s_add_u32 s74, s60, {hx(FL_H)}""").split("\n")
    allq = []
    for st_ in range(20):
        if st_ % 2 == 0: allq += [(max(0, st_ - 4), st_, x) for x in dma_x(st_//2)]
        allq += [(max(0, st_ - 5), st_, x) for x in dma_w(st_)]
    pro = [x for e, st_, x in allq if st_ < o.pw]
    queue = sorted([(e, x) for e, st_, x in allq if st_ >= o.pw], key=lambda q: q[0])
    vm = VM()
    per = -(-len(su)//(len(pro) - 5))
    for i, (t, tag) in enumerate(pro):
        a(t); vm.add(tag)
        if i == 4: stamp(a, o, 1)
        if i >= 4: a("\n".join(su[(i-4)*per:(i-3)*per]))
    if o.prio_c: a(f"s_setprio {o.prio_c}")
    stamp(a, o, 9)
    b1_ld = [(f"buffer_load_dwordx2 v[{B1R+2*n}:{B1R+2*n+1}], v{T2}, s[20:23], s65 offen offset:{32*n}", "b1") for n in range(3)]
    def w2_reg(i, slot):
        r = []
        for dt in range(5):
            d = WREG + slot*20 + dt*4
            if dt < 4: r.append((w2_off(i) if dt == 0 else "") + f"buffer_load_dwordx4 v[{d}:{d+3}], v{VL16}, s[12:15], s69 offen offset:{dt*1024} sc1")
            else: r.append(f"buffer_load_dwordx4 v[{d}:{d+3}], v{VL16B}, s[12:15], s69 offen sc1")
        return r
    pf = [t for i in range(5) for t in w2_reg(i, i)]
    def reads(s):
        fs = FR[s & 1]; r = []
        for n in range(3):
            for h in range(2):
                r.append(f"ds_read_b64_tr_b16 v[{fs+4*n+2*h}:{fs+4*n+2*h+1}], v{VWR+n} offset:{WSL[s%6] - WBASE + h*512}")
        for i in range(4):
            r.append(f"ds_read_b128 v[{fs+12+4*i}:{fs+15+4*i}], v{VXR+(s&1)} offset:{XSL[(s>>1)%3]-XSL[0]+i*2048}")
        return r
    def mfmas(s):
        fs = FR[s & 1]; r = []
        for n in range(3):
            for i in range(4):
                c = ACC + (n*4+i)*4
                r.append(f"v_mfma_f32_16x16x32_bf16 v[{c}:{c+3}], v[{fs+4*n}:{fs+4*n+3}], v[{fs+12+4*i}:{fs+15+4*i}], {'0' if s == 0 else f'v[{c}:{c+3}]'}")
            c = CS + 4*n
            if not o.x_nocs: r.append(f"v_mfma_f32_16x16x32_bf16 v[{c}:{c+3}], v[{fs+4*n}:{fs+4*n+3}], v[{ONES}:{ONES+3}], {'0' if s == 0 else f'v[{c}:{c+3}]'}")
        return r
    B1F, VH = 72, 84
    late = [(f"buffer_load_dwordx2 v[{ST+2*i}:{ST+2*i+1}], v{T0}, s[12:15], s66 offen offset:{128*i} sc1", "st") for i in range(4)] + b1_ld
    for s in range(21):
        dm = []
        if s < 20:
            assert vm.l.count(f"w{s}") == 3 and vm.l.count(f"x{s>>1}") == 2
            a(f"s_waitcnt vmcnt({vm.cnt(f'w{s}', f'x{s>>1}')}) lgkmcnt(0)\ns_barrier")
            if s == 0: stamp(a, o, 2)
            if s % 2 == 0: stamp(a, o, [1,9,10,2,3,4,5,6,7,8][s//2], g1=1)
            fill = [(x, None) for x in reads(s)]
            ready = len([q for q in queue if q[0] <= s])
            while queue and queue[0][0] <= s and len(dm) < (o.capc if ready > 5 else 4): dm.append(queue.pop(0)[1])
            if s >= o.pre_c and not queue:
                while late and len(dm) < 4: dm.append(late.pop(0))
                while len(dm) < o.g1_ld: dm.append((pf.pop(0), "w2"))
        else:
            a("s_waitcnt lgkmcnt(0)\ns_barrier")
            assert not late
            st = []
            for n in range(3):
                for h in range(2):
                    st.append(f"v_lshlrev_b32 v{B1F+4*n+2*h}, 16, v{B1R+2*n+h}\nv_and_b32 v{B1F+4*n+2*h+1}, 0xffff0000, v{B1R+2*n+h}")
            st.append(f"v_and_b32 v{T0}, 1, v{VG}\nv_lshrrev_b32 v{T1}, 1, v{VG}")
            st.append(f"v_lshlrev_b32 v{T1}, 8, v{T1}\nv_lshl_add_u32 v{T1}, v{VQ}, 4, v{T1}")
            st.append(f"v_lshl_add_u32 v{VH}, v{T0}, 10, v{T1}\ns_mul_i32 s60, s{CB}, 12\ns_mul_i32 s61, s{W}, 3\ns_add_u32 s60, s60, s61\ns_mul_i32 s66, s{RB}, {48*4096}\ns_add_u32 s66, s66, {hx(HH)}")
            for n in range(3):
                st.append(f"s_add_u32 s61, s60, {n}\ns_lshr_b32 s62, s61, 1\ns_lshl_b32 s62, s62, 12\ns_and_b32 s61, s61, 1\ns_lshl_b32 s61, s61, 9\ns_add_u32 s62, s62, s61\ns_add_u32 s{63+n}, s62, s66")
            c1 = -2*math.sqrt(2/math.pi)*math.log2(math.e); c2 = c1*0.044715
            st.append(f"s_mov_b32 s60, {hx(fbits(c2))}\ns_mov_b32 s61, {hx(fbits(c1))}\nv_mov_b32 v{VH+1}, s61")
            fill = [(t, None) for t in st]
            for _ in range(o.g1_ld): dm.append((pf.pop(0), "w2"))
        weave(a, vm, mfmas(s-1) if s >= 1 else [], dm, fill)
    stamp(a, o, 3)
    TP, OUT = 64, [88, 92]
    ntile = 0
    for n in range(3):
        for q in range(2):
            ob = OUT[(n*2+q) & 1]
            for il in range(2):
                i = 2*q + il
                c = ACC + (n*4+i)*4
                def ld(k):
                    for _ in range(k):
                        if pf: a(pf.pop(0)); vm.add("w2")
                if ntile < o.gelu_pk:
                    S = f"v[{ST+2*i}:{ST+2*i+1}]"
                    P = [f"v[{TP+2*h}:{TP+2*h+1}]" for h in range(2)]
                    Q = [f"v[{TP+4+2*h}:{TP+4+2*h+1}]" for h in range(2)]
                    for h in range(2): a(f"v_pk_fma_f32 {P[h]}, {S}, v[{CS+4*n+2*h}:{CS+4*n+2*h+1}], v[{B1F+4*n+2*h}:{B1F+4*n+2*h+1}] op_sel:[1,0,0] op_sel_hi:[1,1,1]")
                    for h in range(2): a(f"v_pk_fma_f32 {P[h]}, v[{c+2*h}:{c+2*h+1}], {S}, {P[h]} op_sel_hi:[1,0,1]")
                    for h in range(2): a(f"v_pk_mul_f32 {Q[h]}, {P[h]}, {P[h]}")
                    for h in range(2): a(f"v_pk_fma_f32 {Q[h]}, {Q[h]}, s[60:61], s[60:61] op_sel:[0,0,1] op_sel_hi:[1,0,1]")
                    ld(o.gelu_ld//2)
                    for h in range(2): a(f"v_pk_mul_f32 {Q[h]}, {Q[h]}, {P[h]}")
                    for e in range(4): a(f"v_exp_f32 v{TP+4+e}, v{TP+4+e}")
                    ld((o.gelu_ld+1)//2)
                    for h in range(2): a(f"v_pk_add_f32 {Q[h]}, {Q[h]}, 1.0 op_sel_hi:[1,0]")
                    for e in range(4): a(f"v_rcp_f32 v{TP+4+e}, v{TP+4+e}")
                    for h in range(2): a(f"v_pk_mul_f32 {P[h]}, {P[h]}, {Q[h]}")
                else:
                    for e in range(4): a(f"v_fma_f32 v{TP+e}, v{CS+4*n+e}, v{ST+2*i+1}, v{B1F+4*n+e}")
                    for e in range(4): a(f"v_fmac_f32 v{TP+e}, v{c+e}, v{ST+2*i}")
                    for e in range(4): a(f"v_mul_f32 v{TP+4+e}, v{TP+e}, v{TP+e}")
                    for e in range(4): a(f"v_fma_f32 v{TP+4+e}, v{TP+4+e}, s60, v{VH+1}")
                    ld(o.gelu_ld//2)
                    for e in range(4): a(f"v_mul_f32 v{TP+4+e}, v{TP+4+e}, v{TP+e}")
                    for e in range(4): a(f"v_exp_f32 v{TP+4+e}, v{TP+4+e}")
                    for e in range(4): a(f"v_add_f32 v{TP+4+e}, 1.0, v{TP+4+e}")
                    for e in range(4): a(f"v_rcp_f32 v{TP+4+e}, v{TP+4+e}")
                    ld((o.gelu_ld+1)//2)
                    for e in range(4): a(f"v_mul_f32 v{TP+e}, v{TP+e}, v{TP+4+e}")
                ntile += 1
                if ntile == o.gelu_pk: a("s_barrier")
                for h in range(2): a(f"v_cvt_pk_bf16_f32 v{ob+2*il+h}, v{TP+2*h}, v{TP+2*h+1}")
            a(f"v_permlane16_swap_b32 v{ob}, v{ob+2}\nv_permlane16_swap_b32 v{ob+1}, v{ob+3}")
            a(f"buffer_store_dwordx4 v[{ob}:{ob+3}], v{VH}, s[12:15], s{63+n} offen offset:{2048*q} sc1"); vm.add("h")
    stamp(a, o, 4)
    A2, HB = 0, [80, 96, 112]
    VLA, VLR, VIW, VCN, VONE = 250, 251, 252, 253, 254
    a(f"""v_mul_u32_u24 v{T1}, 336, v{VQ}
    v_lshl_add_u32 v{T1}, v{VG}, 4, v{T1}
    v_add_u32 v{VIW}, s68, v{T1}
    v_add_u32 v{VLA}, s67, v{VL16}
    v_add_u32 v{VLR}, s68, v{VL16}
    v_lshlrev_b32 v1, 9, v0
    v_mov_b32 v{VCN}, {CNT}
    v_mov_b32 v{VONE}, 1
    s_lshl_b32 s66, s{RB}, 12
    s_lshr_b32 s60, s{CB}, 1
    s_lshl_b32 s60, s60, 7
    s_add_u32 s66, s66, s60
    s_and_b32 s60, s{CB}, 1
    s_lshl2_add_u32 s66, s60, s66
    s_add_u32 s66, s66, {hx(FL_H)}""")
    pf += w2_reg(5, 5)
    if o.htouch:
        a(f"""s_add_u32 s60, s{HGR+1}, s{HO}
        s_add_u32 s61, s{HGR+2}, s{HO}
        s_sub_u32 s61, s61, 4096
        v_mov_b32 v2, s60
        v_mov_b32 v3, s61
        v_cmp_gt_u32 vcc, 32, v0
        v_cndmask_b32 v2, v3, v2, vcc
        v_lshl_add_u32 v2, v0, 7, v2""")
    for _ in range(min(o.n1, len(pf))): a(pf.pop(0)); vm.add("w2")
    a(f"s_waitcnt vmcnt({vm.cnt('h')})")
    stamp(a, o, 5)
    if o.wait:
        SK = a.lab("hs")
        lds_arrive(a, 0, VCN, VONE, rtn=0)
        a(f"""s_cbranch_scc0 {SK}
        s_mov_b64 exec, 0xff
        buffer_store_dword v{VONE}, v1, s[12:15], s66 offen sc1
        s_mov_b64 exec, -1
        {SK}:""")
    while pf: a(pf.pop(0)); vm.add("w2")
    tailq = [t for i in range(6, 12) for t in w2_slot(i)]
    assert o.n2 >= 10
    if o.a_dma: a("s_cmp_ge_u32 s2, 160\ns_cbranch_scc1 c_nd1")
    lds_wait4(a, o, 3, VCN, 0)
    for _ in range(o.n2): a(tailq.pop(0))
    if o.a_dma: a("c_nd1:")
    spoll(a, o, "s_load_dwordx2 s[62:63], s[12:13], s74 glc", "s_and_b32 s62, s62, s63\ns_cmp_eq_u32 s62, 1", "HF", o.hsleep)
    if o.prio_g2 != o.prio_c: a(f"s_setprio {o.prio_g2}")
    stamp(a, o, 6)
    for i in range(12): a(f"s_add_u32 s{16+i}, s{HGR + (i >> 2)}, s{HO + (i & 3)}")
    frag = [(i, t) for i in range(o.blk) for t in range(4)] + [(i, t) for t in range(4) for i in range(o.blk, 12)]
    hreg = lambda i, t: HB[0] + 4*(frag.index((i, t)) % 12)
    h_ld = lambda i, t: f"buffer_load_dwordx4 v[{hreg(i, t)}:{hreg(i, t)+3}], v{VL16}, s[12:15], s{16+i} offen offset:{1024*t} {o.h_flags}"
    seq = [(i, t, dt) for i in range(o.blk) for t in range(4) for dt in range(5)]
    seq += [(i, t, dt) for t in range(4) for dt in range(5) for i in range(o.blk, 12)]
    first = {f: min(k for k, m in enumerate(seq) if m[:2] == f) for f in frag}
    last = {f: max(k for k, m in enumerate(seq) if m[:2] == f) for f in frag}
    at = {}
    prev = -1
    for v, f in enumerate(frag):
        if v < 12: a(h_ld(*f)); continue
        k = max(last[frag[v-12]] + 1, first[f] - 5*o.hlead, prev + 2)
        while k % 5 == 4 and k < 20*o.blk: k += 1
        assert k < first[f] - 8, (f, k, first[f])
        at.setdefault(k, []).append(h_ld(*f)); prev = k
    if o.htouch: a(f"buffer_load_dword v{VPOLL}, v2, s[12:15], 0 offen sc1")
    if o.a_dma:
        a("s_cmp_ge_u32 s2, 160\ns_cbranch_scc1 c_nd2")
        for t in tailq: a(t)
        a("c_nd2:")
        lds_wait4(a, o, 3, VCN, 0)
    else:
        for t in tailq: a(t)
    def img(t, dt):
        cc = A2 + (t*5+dt)*4
        return f"ds_write_b128 v{VIW}, v[{cc}:{cc+3}] offset:{t*16*336 + dt*64}"
    nb = 12 - o.blk
    for k, (i, t, dt) in enumerate(seq):
        if k % 20 == 0 and k//20 in (0, 1, 2, 3, 4, 6, 8, 9): stamp(a, o, [1,9,10,2,3,None,4,None,5,6][k//20], g1=2)
        wb = WREG + (i % 6)*20; hb = hreg(i, t); c = A2 + (t*5+dt)*4
        a(f"v_mfma_f32_16x16x32_bf16 v[{c}:{c+3}], v[{wb+4*dt}:{wb+4*dt+3}], v[{hb}:{hb+3}], {'0' if i == 0 else f'v[{c}:{c+3}]'}")
        kk = t*5 + dt
        if 1 <= i <= 6 and i < o.blk and kk in (2, 3, 7, 12, 13):
            j = (2, 3, 7, 12, 13).index(kk); d = WREG + (i-1)*20 + 4*j
            vb, off = (VLA, (i-1)*5120) if i <= 2 else (VLR, (i-3)*5120)
            a(f"ds_read_b128 v[{d}:{d+3}], v{vb} offset:{off+j*1024}")
        for x in at.get(k, []): a(x)
        if i == o.blk + 2 and kk >= 2:
            a(img(*divmod(kk - 2, 5)))
            if (kk - 2) % 5 == 4: lds_arrive(a, 4 + (kk - 2)//5, VCN, VONE)
    stamp(a, o, 7)
    stamp(a, o, 7, g1=2)
    a(img(3, 3)); a(img(3, 4))
    lds_arrive(a, 7, VCN, VONE)
    if o.prof:
        a("s_waitcnt lgkmcnt(0)")
        stamp(a, o, 8); stamp(a, o, 8, g1=2)
        stamp_flush(a, o, 11, 0, T1)
    a("s_endpgm")

def role_a(a, o):
    XR, VI, VHI, WT = 4, 246, 247, 72
    XF = XR + 30
    SUM, SQ, SC, MU, S2, Q2 = 54, 55, 56, 57, 58, 59
    VWI, VRI, VXS, VSS = 60, 61, 62, 63
    NU = 71
    a(f""".p2align 6
    role_a:
    s_and_b32 s{TB}, s2, 7
    s_lshl_b32 s{TB}, s{TB}, 5
    s_lshr_b32 s60, s2, 3
    s_add_u32 s{TB}, s{TB}, s60
    s_sub_u32 s{TB}, s{TB}, 20
    s_cmp_lt_u32 s60, 28
    s_cselect_b32 s{NU}, 3, 2
    s_cselect_b32 s62, {12*8*1280}, 0
    s_cmp_lt_u32 s77, 4
    s_cbranch_scc1 a_c""")
    a(f"""s_sub_u32 s72, s2, 160
    s_and_b32 s61, s72, 1
    s_lshr_b32 s60, s72, 1
    s_lshl2_add_u32 s62, s60, s{W}
    s_lshl4_add_u32 s62, s62, s61
    s_mul_i32 s62, s62, 640
    s_mul_i32 s63, s{W}, 5120
    v_lshrrev_b32 v{T0}, 3, v0
    v_mul_u32_u24 v{T0}, {1280-128}, v{T0}
    v_add3_u32 v1, v{T0}, v{VL16}, s62""")
    for n in range(5):
        a(f"s_add_u32 m0, s63, {W2T + (1024-128)*n}\nglobal_load_lds_dwordx4 v1, s[16:17] offset:{128*n} {o.sm_flags}")
    a(f"""s_branch a_h
    a_c:
    v_lshrrev_b32 v{VHI}, 5, v0
    v_and_b32 v{VI}, 31, v0
    s_lshl2_add_u32 s60, s{TB}, s{W}
    s_mul_i32 s60, s60, 2560
    v_mul_u32_u24 v1, 1280, v{VHI}
    v_lshl_add_u32 v2, v{VI}, 3, s60
    v_add_u32 v1, v1, v2
    v_add_u32 v2, {12*8*1280}, v1
    v_add_u32 v3, s62, v2""")
    for u in range(3):
        for c in range(5):
            a(f"global_load_dwordx2 v[{XR+10*u+2*c}:{XR+10*u+2*c+1}], v{1+u}, s[4:5] offset:{256*c}")
    a(f"""s_mul_i32 s60, s{W}, 2688
    s_add_u32 s60, s60, {LNI}
    v_mul_u32_u24 v{T0}, 1344, v{VHI}
    v_lshl_add_u32 v{T0}, v{VI}, 3, v{T0}
    v_add_u32 v{VWI}, s60, v{T0}
    s_mov_b32 s60, 0x3f803f80
    s_waitcnt vmcnt(10)""")
    stamp(a, o, 10)
    a(f"""a_ln:
    v_mov_b32 v{SUM}, 0
    v_mov_b32 v{SQ}, 0""")
    unp = lambda k: [f"v_lshlrev_b32 v{XF+2*k}, 16, v{XR+k}", f"v_and_b32 v{XF+2*k+1}, 0xffff0000, v{XR+k}"]
    for k in range(10): a(f"v_dot2c_f32_bf16 v{SUM}, s60, v{XR+k}\nv_dot2c_f32_bf16 v{SQ}, v{XR+k}, v{XR+k}")
    fill = [t for k in range(10) for t in unp(k)]
    def fl(n):
        for _ in range(n):
            if fill: a(fill.pop(0))
    fl(2)
    for r in (8, 4, 2, 1):
        fl(2)
        a(f"v_add_f32_dpp v{SUM}, v{SUM}, v{SUM} row_ror:{r} row_mask:0xf bank_mask:0xf\nv_add_f32_dpp v{SQ}, v{SQ}, v{SQ} row_ror:{r} row_mask:0xf bank_mask:0xf")
    a(f"v_mov_b32 v{T0}, v{SUM}\nv_mov_b32 v{T1}, v{SQ}"); fl(2)
    a(f"v_permlane16_swap_b32 v{SUM}, v{T0}\nv_permlane16_swap_b32 v{SQ}, v{T1}"); fl(1)
    a(f"v_add_f32 v{SUM}, v{SUM}, v{T0}\nv_add_f32 v{SQ}, v{SQ}, v{T1}"); fl(1)
    a(f"v_mul_f32 v{MU}, {hx(fbits(1/640))}, v{SUM}\nv_mul_f32 v{SQ}, {hx(fbits(1/640))}, v{SQ}"); fl(1)
    a(f"v_cvt_pk_bf16_f32 v{SUM}, v{MU}, v{MU}\nv_fma_f32 v{SQ}, -v{MU}, v{MU}, v{SQ}"); fl(1)
    a(f"v_and_b32 v{S2}, 0xffff0000, v{SUM}\nv_max_f32 v{SC}, 0, v{SQ}"); fl(99)
    rnd = lambda v: [f"v_cvt_pk_bf16_f32 v{v}, v{v}, v{v}", f"v_and_b32 v{v}, 0xffff0000, v{v}"]
    eps = hx(fbits(1e-5))
    ch1 = [f"v_cvt_pk_bf16_f32 v{SQ}, v{SC}, v{SC}", f"v_and_b32 v{SQ}, 0xffff0000, v{SQ}", f"v_add_f32 v{SQ}, {eps}, v{SQ}"] + rnd(SQ) + [f"v_sqrt_f32 v{SQ}, v{SQ}"] + rnd(SQ) + [f"v_rcp_f32 v{SQ}, v{SQ}"]
    ch2 = [f"v_mul_f32 v{SC}, v{SC}, v{SQ}", f"v_mul_f32 v{SC}, v{SC}, v{SQ}"] + rnd(SC) + [f"v_add_f32 v{SC}, {eps}, v{SC}"] + rnd(SC) + [f"v_sqrt_f32 v{SC}, v{SC}"] + rnd(SC) + [f"v_rcp_f32 v{SC}, v{SC}", f"v_mul_f32 v{SC}, v{SC}, v{SQ}", f"v_mul_f32_e64 v{MU}, -v{MU}, v{SC}"]
    pr = lambda k: f"v[{XF+2*k}:{XF+2*k+1}]"
    cv = [f"v_cvt_pk_bf16_f32 v{XR+k}, v{XF+2*k}, v{XF+2*k+1}" for k in range(10)]
    el1 = [f"v_pk_add_f32 {pr(k)}, {pr(k)}, v[{S2}:{Q2}] op_sel_hi:[1,0] neg_lo:[0,1] neg_hi:[0,1]" for k in range(10)] + cv
    el2 = [t for k in range(10) for t in unp(k)] + [f"v_pk_mul_f32 {pr(k)}, v[{SUM}:{SQ}], {pr(k)} op_sel:[1,0] op_sel_hi:[1,1]" for k in range(10)]
    for ch, el in ((ch1, el1), (ch2, el2)):
        for k, t in enumerate(el):
            if k % 2 == 0 and ch: a(ch.pop(0))
            a(t)
        assert not ch
    for c in range(5):
        a(cv[2*c]); a(cv[2*c+1])
        a(f"ds_write_b64 v{VWI}, v[{XR+2*c}:{XR+2*c+1}] offset:{256*c}")
    a(f"""s_mov_b32 exec_lo, 1
    s_mov_b32 exec_hi, 1
    ds_write_b64 v{VWI}, v[{SC}:{MU}] offset:1280
    s_mov_b64 exec, -1
    s_waitcnt lgkmcnt(0)
    s_barrier
    s_sub_u32 s{NU}, s{NU}, 1
    s_cmp_eq_u32 s{NU}, 0
    s_cbranch_scc1 role_c
    v_add_u32 v{VWI}, 10752, v{VWI}""")
    for i in range(20): a(f"v_mov_b32 v{XR+i}, v{XR+10+i}")
    a("s_branch a_ln")
    TR = 4
    a("a_h:")
    a(f"""s_lshl2_add_u32 s73, s61, s{W}
    s_mul_i32 s73, s73, 48
    s_add_u32 s73, s73, s60
    s_mul_i32 s73, s73, 5120
    s_add_u32 s73, s73, {hx(W2F)}""")
    h_common(a, o, 100)
    a(f"""s_mov_b64 exec, 15
    ds_write_b128 v{VL16}, v[100:103] offset:{CNT}
    s_mov_b64 exec, -1
    v_lshrrev_b32 v{T2}, 2, v{VQ}
    v_and_b32 v{T1}, 3, v0
    v_lshlrev_b32 v{T1}, 3, v{T1}
    v_mul_u32_u24 v{VRI}, 1344, v{T2}
    v_lshrrev_b32 v{VXS}, 3, v0
    v_lshl_add_u32 v{VRI}, v{VG}, 5, v{VRI}
    s_lshl_b32 s60, s{W}, 7
    s_add_u32 s60, s60, {LNI}
    v_mul_u32_u24 v{VXS}, {32768 - 128}, v{VXS}
    v_add3_u32 v{VRI}, v{VRI}, v{T1}, s60
    v_add_u32 v{VXS}, v{VXS}, v{VL16}
    v_mul_u32_u24 v{VWI}, 1344, v0
    v_lshlrev_b32 v{VSS}, 3, v0
    s_lshl_b32 s61, s{TB}, 6
    s_lshl_b32 s64, s{W}, 18
    s_lshl1_add_u32 s64, s61, s64
    s_add_u32 s64, s64, {hx(XN)}
    s_add_u32 s65, s64, {hx(4<<18)}
    s_add_u32 s66, s64, {hx(8<<18)}
    s_add_u32 s67, s61, {hx(STATS)}
    v_mul_u32_u24 v{T0}, 5120, v{VG}
    v_lshl_add_u32 v{T0}, v{T2}, 7, v{T0}
    v_add_u32 v{T0}, v{T0}, v{T1}
    v_add_u32 v{VL16B}, 4096, v{VL16}""")
    for i in range(5):
        a(f"""s_mul_i32 s60, s{W}, 160
        s_add_u32 s60, s60, {32*i}
        s_lshr_b32 s61, s60, 7
        s_mul_i32 s61, s61, {1024-128}
        s_add_u32 s60, s60, s61
        v_add_u32 v{64+i}, s60, v{T0}""")
    if o.wait:
        a(f"""s_lshl2_add_u32 s60, s72, s{W}
        s_mul_i32 s60, s60, {6*128}
        s_add_u32 s60, s60, {hx(FL_H)}
        v_lshrrev_b32 v{T0}, 1, v0
        v_mul_u32_u24 v{T0}, 96, v{T0}
        v_add_u32 v{T0}, v{T0}, v{VL16}
        s_mov_b64 exec, 0xfff
        buffer_store_dwordx4 v[100:103], v{T0}, s[12:15], s60 offen sc1
        s_mov_b64 exec, -1""")
    a(f"s_mov_b32 s69, 0\ns_waitcnt " + (f"vmcnt({1 if o.wait else 0}) " if not o.a_late else "") + "lgkmcnt(0)")
    stamp(a, o, 5)
    a("a_mv:\ns_barrier")
    for m in range(2):
        for h in range(2): a(f"ds_read_b64_tr_b16 v[{TR+4*m+2*h}:{TR+4*m+2*h+1}], v{VRI} offset:{m*512 + h*4*1344}")
    a(f"s_cmp_ge_u32 s{W}, 2\ns_cbranch_scc1 a_m3")
    for h in range(2): a(f"ds_read_b64_tr_b16 v[{TR+8+2*h}:{TR+8+2*h+1}], v{VRI} offset:{1024 + h*4*1344}")
    a(f"""buffer_store_dwordx4 v[{TR+8}:{TR+11}], v{VXS}, s[12:15], s66 offen sc1
    a_m3:
    s_cmp_lg_u32 s{W}, 3
    s_cbranch_scc1 a_m4
    s_mov_b64 exec, 0xff
    ds_read_b64 v[{TR+8}:{TR+9}], v{VWI} offset:{LNI + 1280}
    buffer_store_dwordx2 v[{TR+8}:{TR+9}], v{VSS}, s[12:15], s67 offen sc1
    s_mov_b64 exec, -1
    a_m4:""")
    for m, so in enumerate((64, 65)): a(f"buffer_store_dwordx4 v[{TR+4*m}:{TR+4*m+3}], v{VXS}, s[12:15], s{so} offen sc1")
    if o.a_late: a("s_cmp_eq_u32 s69, 2\ns_cbranch_scc1 a_m6\ns_cmp_eq_u32 s69, 0\ns_cbranch_scc1 a_m5")
    else: a("s_cmp_eq_u32 s69, 2\ns_cbranch_scc1 a_m6\ns_cmp_eq_u32 s69, 1\ns_cbranch_scc1 a_m5")
    stamp(a, o, 1)
    w2st = lambda i: f"buffer_store_dwordx4 v[{WT+4*i}:{WT+4*i+3}], v{VL16 if i < 4 else VL16B}, s[12:15], s73 offen offset:{1024*(i&3)} sc1"
    for i in range(5):
        for h in range(2):
            a(f"ds_read_b64_tr_b16 v[{WT+4*i+2*h}:{WT+4*i+2*h+1}], v{64+i} offset:{W2T + h*512}")
    a("s_waitcnt lgkmcnt(0)")
    for i in range(5 if o.a_late else o.a_w): a(w2st(i))
    a("s_branch a_m6\na_m5:")
    if o.a_late: a(f"s_waitcnt vmcnt({3 if o.wait else 2})")
    else:
        for i in range(o.a_w, 5): a(w2st(i))
    a(f"""a_m6:
    v_add_u32 v{VWI}, 10752, v{VWI}
    v_add_u32 v{VRI}, 10752, v{VRI}""")
    for so in (64, 65, 66, 67): a(f"s_add_u32 s{so}, s{so}, {12*64 if so == 67 else 12*128}")
    a(f"s_add_u32 s69, s69, 1\ns_cmp_lt_u32 s69, s{NU}\ns_cbranch_scc1 a_mv")
    stamp(a, o, 2)
    a(f"v_mov_b32 v{VPOLL}, 0")
    if o.wait:
        a("s_waitcnt vmcnt(0)")
        lds_arrive(a, 9, VCN, VONE, rtn=T1)
        a(f"""s_cbranch_scc0 a_na
        v_mov_b32 v{VPOLL}, 1
        s_mov_b64 exec, 1
        buffer_atomic_add v{VPOLL}, off, s[28:31], 0 sc0 sc1
        s_mov_b64 exec, -1
        a_na:""")
    def bcast():
        SK = a.lab("bc")
        a(f"""v_readfirstlane_b32 s60, v{VPOLL}
        s_cmp_lg_u32 s60, 95
        s_cbranch_scc1 {SK}
        s_mov_b64 exec, 1
        buffer_store_dword v{VONE}, off, s[28:31], 0 offset:128 sc1
        s_mov_b64 exec, -1
        {SK}:""")
    slots = [t for i in range(6, 12) for t in w2_slot(i)]
    for s in range(21):
        if o.wait and s == o.bc_at: bcast()
        pre_check(a, o, s)
        a("s_barrier")
        if s == 0: stamp(a, o, 3)
        pre_issue(a, o, s)
        if o.a_dma and s == 3: a(phase2_scalars(o, False))
        if o.a_dma and max(16, o.pre_c) <= s < 20:
            for _ in range(min(3, len(slots) - 20)): a(slots.pop(0))
    stamp(a, o, 4)
    if o.a_dma:
        while len(slots) > o.a_rest: a(slots.pop(0))
        a("s_barrier")
        for t in slots: a(t)
        a("s_waitcnt vmcnt(0)")
        lds_arrive(a, 3, VCN, VONE)
        a("s_branch h_noc")
    else:
        lds_arrive(a, 3, VCN, VONE)
        a(f"s_mov_b32 s65, {OOB}\nv_mov_b32 v{T2}, 0\ns_barrier\ns_branch h_noc")

KEB, VCN, VONE = 70, 227, 245
def h_common(a, o, zq):
    a("s_load_dwordx2 s[16:17], s[0:1], 112\ns_load_dwordx2 s[24:25], s[0:1], 104\ns_load_dwordx2 s[28:29], s[0:1], 120")
    srd(a, 4, T*D*2); srd(a, 12, WS_END); srd(a, 16, T*D*2); srd(a, 24, D*2); srd(a, 28, 256)
    a(f"s_mul_i32 s{KEB}, s{W}, {KE}\nv_mov_b32 v{VCN}, {CNT}\nv_mov_b32 v{VONE}, 1\ns_movk_i32 s75, 128")
    for i in range(4): a(f"v_mov_b32 v{zq+i}, 0")
def pre_issue(a, o, s):
    if o.wait and s == o.pre_at: only_w0(a, lambda: a(f"buffer_load_dword v{VPOLL}, off, s[28:31], s75 sc1"))
def pre_check(a, o, s):
    if o.wait and s == o.pre_c: only_w0(a, lambda: poll(a, o, VPOLL, None, 28, "s75", 1, "1", name="PRE"))

def role_h(a, o):
    a("role_h:")
    DA, FA, FB = 4, 20, 52
    VAL = [4, 100, 152]
    SEED, UR, BAND = 56, 84, 204
    VRA, VRB, VSC = 224, 225, 226
    VA, VA2, VB, VK2, VK3, VSH, VDS = 232, 233, 234, 235, 236, 237, 238
    VKW, VKZ, VUZ, VUW, VD2, VD3 = 239, 240, 241, 242, 243, 244
    VI, VHI = 246, 247
    ZQ, AFM = 84, 80
    a(f"""s_and_b32 s60, s2, 0xf0
    s_and_b32 s61, s2, 7
    s_lshl1_add_u32 s60, s61, s60
    s_bfe_u32 s61, s2, 0x10003
    s_add_u32 s{TB}, s60, s61
    s_lshl2_add_u32 s{CH}, s{TB}, s{W}
    s_mul_i32 s60, s{CH}, 384
    v_add_u32 v21, s60, v{VL16}
    s_mul_i32 s{UBW}, s{W}, 2304
    s_lshl_b32 s76, s{CH}, 1
    s_and_b32 s76, s76, 0x7fc
    s_mov_b64 exec, 0xffffff""")
    for k in range(6):
        a(f"s_add_u32 m0, s{UBW}, {PARB + 384*k}\nglobal_load_lds_dwordx4 v21, s[{32+2*k}:{33+2*k}] {o.par_flags}")
    a("s_mov_b64 exec, -1")
    bf16_sload(a, 79, 44); bf16_sload(a, 77, 46)
    if o.stouch:
        a(f"""s_lshr_b32 s60, s2, 3
        s_lshl2_add_u32 s60, s60, s{W}
        s_mul_i32 s60, s60, 24
        v_add_u32 v22, s60, v0
        v_mul_u32_u24 v23, 13108, v22
        v_lshrrev_b32 v23, 16, v23
        v_lshrrev_b32 v24, 5, v23
        v_mul_u32_u24 v24, {3*32*1280}, v24
        v_mul_u32_u24 v23, {1280-640}, v23
        v_lshl_add_u32 v22, v22, 7, v23
        s_bfe_u32 s60, s2, 0x20001
        s_mul_i32 s60, s60, {32*1280}
        s_and_b32 s61, s2, 1
        s_mul_i32 s61, s61, 640
        s_add_u32 s60, s60, s61
        v_add3_u32 v22, v22, v24, s60
        s_mov_b64 exec, 0xffffff
        global_load_dword v23, v22, s[16:17]
        s_mov_b64 exec, -1""")
    if not o.b0late: a("s_barrier")
    if o.prio_h: a(f"s_setprio {o.prio_h}")
    h_common(a, o, ZQ)
    a(f"""s_add_u32 s60, s{UBW}, {PARB}
    v_lshl_add_u32 v20, v0, 1, s60
    s_mul_i32 s{UBW}, s{W}, {UP}
    s_add_u32 s{UBW}, s{UBW}, {UB}
    v_add_u32 v{VKZ}, s{KEB}, v{VL16}
    v_add_u32 v{T0}, s{UBW}, v{VL16}""")
    for m in range(4): a(f"ds_write_b128 v{VKZ}, v[{ZQ}:{ZQ+3}] offset:{1024*m}")
    a(f"s_mov_b64 exec, 0x3fffffff\nds_write_b128 v{T0}, v[{ZQ}:{ZQ+3}]\ns_mov_b64 exec, -1")
    a(f"v_lshrrev_b32 v{VHI}, 5, v0\nv_and_b32 v{VI}, 31, v0\ns_mul_i32 s{KGB}, s{W}, {KG}")
    main = a
    items = []
    items += f"""s_lshr_b32 s66, s{TB}, 1
    s_lshl2_add_u32 s66, s66, s{W}
    s_lshl_b32 s66, s66, 13
    s_and_b32 s60, s{TB}, 1
    s_lshl_b32 s60, s60, 6
    s_add_u32 s66, s66, s60
    s_add_u32 s66, s66, {hx(XN)}
    s_add_u32 s67, s66, 4096
    v_and_b32 v{VUZ}, 60, v0
    v_add_lshl_u32 v{VUZ}, v{VUZ}, v0, 4""".split("\n")
    items += f"""v_sub_u32 v{T0}, 63, v0
    v_lshl_add_u32 v{VKW}, v{T0}, 4, s{KEB}
    v_lshl_add_u32 v{VD2}, v{T0}, 2, s{KEB}
    v_lshrrev_b32 v{T0}, 1, v{T0}
    v_lshl_add_u32 v{VD3}, v{T0}, 2, s{KEB}
    v_and_b32 v{T0}, 3, v0
    v_mul_u32_u24 v{T0}, {UP}, v{T0}
    v_lshrrev_b32 v{T1}, 2, v0
    v_lshl_add_u32 v{T0}, v{T1}, 4, v{T0}
    s_lshl_b32 s60, s{W}, 10
    s_add_u32 s60, s60, {UB + 480}
    v_add_u32 v{VUW}, s60, v{T0}
    v_lshlrev_b32 v{T0}, 3, v{VG}
    v_sub_u32 v{T2}, v{T0}, v{VQ}
    v_add_u32 v{T0}, 16, v{T2}
    v_lshrrev_b32 v{T0}, 1, v{T0}
    v_and_b32 v{T1}, 1, v0
    v_xor_b32 v{T1}, 1, v{T1}
    v_mul_u32_u24 v{T1}, {CPB}, v{T1}
    v_lshl_add_u32 v{T0}, v{T0}, 2, v{T1}
    v_add_u32 v{VA}, s{KEB}, v{T0}
    v_add_u32 v{VA2}, 512, v{VA}
    v_lshlrev_b32 v{T0}, 5, v{VQ}
    v_lshl_add_u32 v{T0}, v{VG}, 4, v{T0}
    v_add_u32 v{VB}, s{UBW}, v{T0}
    v_lshlrev_b32 v{T0}, 2, v{VG}
    v_sub_u32 v{T0}, v{T0}, v{VQ}
    v_add_u32 v{T0}, 15, v{T0}
    s_add_u32 s60, s{KEB}, {D3O}
    v_lshl_add_u32 v{VK3}, v{T0}, 2, s60
    s_add_u32 s60, s{KEB}, {D2O}
    v_lshl_add_u32 v{VK2}, v{T0}, 3, s60
    v_add_u32 v{T2}, 15, v{T2}
    v_min_u32 v{VSH}, 31, v{T2}
    v_mul_u32_u24 v{T0}, 272, v{VI}
    v_subrev_u32 v{T1}, 16, v{VI}
    v_lshl_add_u32 v{T0}, v{VHI}, 4, v{T0}""".split("\n")
    items += [f"v_cmp_lt_u32 vcc, 24, v{VI}\nv_add_u32 v{VRB}, s{KGB}, v{T0}\nv_cndmask_b32 v{T1}, v{VI}, v{T1}, vcc"]
    for ln, row in ((5, 4), (7, 12), (13, 12), (24, 13)):
        items += [f"v_writelane_b32 v{T1}, {row}, {ln}", f"v_writelane_b32 v{T1}, {row}, {ln+32}"]
    items += [f"v_mul_u32_u24 v{T0}, 272, v{T1}", f"v_lshl_add_u32 v{T0}, v{VHI}, 4, v{T0}", f"v_add_u32 v{VRA}, s{KGB}, v{T0}"]
    def band(d, lo, hi, mul):
        r = [f"s_mov_b32 s62, {hx(((1 << (hi-lo+1)) - 1) << (lo+15))}\nv_lshrrev_b32_e64 v{T2}, v{VSH}, s62", f"v_and_b32 v{T2}, 0xff, v{T2}", f"v_lshl_or_b32 v{T2}, v{T2}, 15, v{T2}"]
        r += [f"v_lshrrev_b32 v{d+i}, {2*i}, v{T2}" for i in range(1, 4)]
        r += [f"v_and_b32 v{d+i}, 0x10001, v{d+i if i else T2}" for i in range(4)]
        return r + [f"v_mul_u32_u24 v{d+i}, {mul}, v{d+i}" for i in range(4)]
    for bi, (lo, hi) in enumerate([(6, 10), (3, 5), (11, 13), (4, 12), (5, 11)]): items += band(BAND + 4*bi, lo, hi, "0x3f80")
    items += band(AFM, 12, 13, "1")[:3] + [f"v_mov_b32 v{VSH}, v{T2}"]
    PAR, CP, MX, ZL, ZR, VDT, Z8 = 110, 128, 134, 135, 136, 137, 138
    for i in range(18): a(f"v_mov_b32 v{PAR+i}, 0")
    for t in items[:o.ipre]: a(t)
    misc = items[o.ipre:]
    dt_setup(a, VDT, 79)
    bf16_pick(a, 77)
    a(f"""v_mov_b32 v{VDS}, s77
    v_mul_f32 v{ZL}, {hx(fbits(math.log2(math.e)))}, v{VDT}
    v_mul_f32 v{ZR}, {hx(fbits(1/(2*math.pi)))}, v{VDT}
    s_waitcnt vmcnt(0)""")
    if o.b0late: a("s_barrier")
    for k in (2, 4, 5, 3, 0, 1):
        for p in range(3):
            a(f"ds_read_u16_d16_hi v{PAR+6*p+k}, v20 offset:{384*k + 128*p}")
    a = Asm()
    for p in range(3):
        b = PAR + 6*p + 2
        a(f"v_mul_f32 v{CP+2*p}, v{b}, v{b+2}\nv_mul_f32 v{CP+2*p+1}, v{b}, v{b+3}")
    for p in range(3):
        b = PAR + 6*p + 2
        a(f"v_fma_f32 v{CP+2*p}, -v{b+1}, v{b+3}, v{CP+2*p}\nv_fmac_f32 v{CP+2*p+1}, v{b+1}, v{b+2}")
    a(f"""v_max3_f32 v{MX}, abs(v{CP}), abs(v{CP+1}), abs(v{CP+2})
    v_max3_f32 v{T0}, abs(v{CP+3}), abs(v{CP+4}), abs(v{CP+5})
    v_max_f32 v{MX}, v{MX}, v{T0}""")
    zs = []
    for p in range(3): zs += [f"v_mul_f32 v{PAR+6*p}, v{PAR+6*p}, v{ZL}", f"v_mul_f32 v{PAR+6*p+1}, v{PAR+6*p+1}, v{ZR}"]
    for p in range(3): zs += [f"v_mul_f32 v{PAR+6*p+2}, 0x43800000, v{PAR+6*p}", f"v_mul_f32 v{PAR+6*p+3}, 0x43800000, v{PAR+6*p+1}",
                              f"v_mul_f32 v{PAR+6*p+4}, 0x41000000, v{PAR+6*p}", f"v_mul_f32 v{PAR+6*p+5}, 0x41000000, v{PAR+6*p+1}"]
    def z2(n=3):
        for _ in range(n):
            if zs: a(zs.pop(0))
    for r in (8, 4, 2, 1):
        z2()
        a(f"v_max_f32_dpp v{MX}, v{MX}, v{MX} row_ror:{r} row_mask:0xf bank_mask:0xf")
    a(f"v_mov_b32 v{T0}, v{MX}"); z2()
    a(f"v_permlane16_swap_b32 v{MX}, v{T0}\nv_max_f32 v{MX}, v{MX}, v{T0}\nv_mov_b32 v{T0}, v{MX}"); z2()
    a(f"""v_permlane32_swap_b32 v{MX}, v{T0}
    v_max_f32 v{MX}, v{MX}, v{T0}
    v_frexp_exp_i32_f32 v{MX}, v{MX}
    v_sub_u32 v{T0}, 5, v{MX}
    v_subrev_u32 v{MX}, 5, v{MX}""")
    for i in range(6): a(f"v_ldexp_f32 v{CP+i}, v{CP+i}, v{T0}")
    a(f"v_ldexp_f32 v{VSC}, v{VDT}, v{MX}")
    Rt = [(f"R{e}", f"R{e-top(e)}", f"u{top(e)}") for e in range(1, 8)]
    Gt = [(f"R{256*k}", f"R{256*(k-top(k))}", f"g{top(k)}") for k in range(1, 9)]
    St = [("R258", "R2", "g1"), ("R260", "R4", "g1"), ("R262", "R6", "g1"), ("R516", "R4", "g2"), ("R772", "R260", "g2")]
    Et = [(f"E{j}", f"E{j-top(j)}", f"E{top(j)}") for j in range(1, 32) if j != top(j)]
    tasks = Rt + Gt + St + Et
    names = ["R0", "E1", "E2", "E4", "E8", "E16"] + [t[0] for t in tasks]
    nm = ("u1", "u2", "u4", "g1", "g2", "g4", "g8")
    locs = [dict({x: SEED + 7*p + i for i, x in enumerate(nm)}, **{x: VAL[p] + i for i, x in enumerate(names)}) for p in range(3)]
    for p in range(3): a(f"v_cvt_pk_f16_f32 v{locs[p]['R0']}, v{CP+2*p}, -v{CP+2*p+1}")
    for p in range(3):
        b = PAR + 6*p
        chains(a, o, [(160, b, b+1, [locs[p][x] for x in nm[:3]], True), (166, b+2, b+3, [locs[p][x] for x in nm[3:]], True),
                      (172, b+4, b+5, [locs[p][x] for x in names[1:6]], False)])
    items = a.lines + [t for p in range(3) for t in products(tasks, locs[p])] + misc
    for t in items[:o.hpre]: main(t)
    items = items[o.hpre:]
    a = main
    a("h_g1:")
    kwr = lambda p: [f"ds_write_addtid_b32 v{locs[p][x]} offset:{tab_off(x)}" for x in names]
    work = {}
    for k in range(o.nw0): work[k] = items[:o.hw0]; items = items[o.hw0:]
    per = -(-len(items)//(o.tw_at - o.nw0))
    for k in range(o.nw0, o.tw_at): work[k] = items[:per]; items = items[per:]
    w0 = [f"s_mov_b32 m0, s{KGB}\nv_mov_b32 v{T0}, 0x3c00\nds_write_addtid_b32 v{T0} offset:{KGO}"] + kwr(0)
    assert o.tw_at >= 17
    for k in range(o.tw_at, 20): work[k] = w0[:o.tw_n]; w0 = w0[o.tw_n:]
    uld = [f"buffer_load_dwordx4 v[{UR+4*m}:{UR+4*m+3}], v{VUZ}, s[12:15], s{66 + (m >> 1)} offen offset:{2048*(m & 1)} sc1" for m in range(4)]
    for s in range(20):
        pre_check(a, o, s)
        if s % 2 == 0: stamp(a, o, 1 + s//2, g1=1)
        a("s_barrier")
        if s == 0: stamp(a, o, 3)
        pre_issue(a, o, s)
        if s >= max(o.pre_c, 16) and uld: a(uld.pop(0))
        for x in work.get(s, []): a(x)
    a("s_barrier")
    stamp(a, o, 4)
    a(f"s_setprio {o.prio_tab}")
    for t in uld: a(t)
    for t in w0: a(t)
    FRG = [[(20+4*k, 52+4*k) for k in range(8)], [(84+8*k, 88+8*k) for k in range(8)], [(148+8*k, 152+8*k) for k in range(7)] + [(20, 24)]]
    def krd(p, k): return f"ds_read_b128 v[{FRG[p][k][0]}:{FRG[p][k][0]+3}], v{VRA} offset:{KGO + 32*272 + 32*k}\nds_read_b128 v[{FRG[p][k][1]}:{FRG[p][k][1]+3}], v{VRB} offset:{KGO + 32*k}"
    def kmf(p, k): return f"v_mfma_f32_32x32x16_f16 v[{DA}:{DA+15}], v[{FRG[p][k][0]}:{FRG[p][k][0]+3}], v[{FRG[p][k][1]}:{FRG[p][k][1]+3}], {'0' if p == 0 and k == 0 else f'v[{DA}:{DA+15}]'}"
    Tt = [DA+i for i in range(8)]; Q0, Q1, P0, P1, P2 = DA+8, DA+9, DA+10, DA+11, DA+12
    T8, Q0n, P0n, P1n = 228, 229, 230, 231
    AC, B0, F1, AFX, A0, DP, WF, KV = 4, 36, 68, 76, 80, [92, 116], [140, 152], 164
    EXT, W512, K0, D2W, D3W = 20, 28, 30, 31, 32
    dppm = "row_mask:0xf bank_mask:0xf"
    rdB = lambda d, nu, rho: f"ds_read_b128 v[{d}:{d+3}], v{VB} offset:{512*nu - 64*rho + 448}"
    rdF = lambda j: f"ds_read_b128 v[{F1+4*(j&1)}:{F1+4*(j&1)+3}], v{VB} offset:{512*j + 432}"
    pre = [rdF(0), rdF(1)] + [rdB(B0+4*nu, nu, 0) for nu in range(8)]
    afx = [t.replace(f"v{T2}", f"v{VSH}") for t in band(AFX, 12, 13, "s63")[3:]]
    def bar_d():
        stamp(a, o, 2)
        a("s_waitcnt lgkmcnt(0)\ns_barrier")
        stamp(a, o, 1)
    for k in range(8): a(krd(0, k))
    for t in kwr(1): a(t)
    for m in range(4): a(f"ds_write_b128 v{VUW}, v[{UR+4*m}:{UR+4*m+3}] offset:{256*m}")
    for k in range(8): a(krd(1, k))
    order = [(p, k) for p in range(3) for k in range(8)]
    if o.dpos == 1:
        bar_d()
        for n, t in enumerate(kwr(2)):
            if n % 4 == 0 and n < 48: a(kmf(*order.pop(0)))
            a(t)
        for k in range(8):
            if k % 2 == 0: a(kmf(*order.pop(0)))
            a(krd(2, k))
        if o.early3: lds_arrive(a, 3, VCN, VONE)
    else:
        for t in kwr(2): a(t)
        for k in range(7): a(krd(2, k))
        bar_d()
    for p, k in order:
        a(kmf(p, k))
        if (p, k) == (0, 1):
            a(krd(2, 7))
            if o.early3: lds_arrive(a, 3, VCN, VONE)
        if p > 0:
            for _ in range(2 if o.dpos == 1 else 1):
                if pre: a(pre.pop(0))
            if len(afx) > 4: a(afx.pop(0))
    assert not pre and len(afx) == 4
    stamp(a, o, 5)
    if o.prio_conv != o.prio_tab: a(f"s_setprio {o.prio_conv}")
    ex = [f"v_mul_f32 v{DA+i}, v{DA+i}, v{VSC}" for i in (0, 8, 10, 11, 12, 9, 1, 2, 3, 4, 5, 6, 7)]
    nb = ((T8, Tt[0], Q0), (Q0n, Q0, P0), (P0n, P0, P1), (P1n, P1, P2))
    ex += [f"v_mov_b32_dpp v{d}, v{n} wave_rol:1 {dppm}" for d, c, n in nb]
    ex += [f"v_mov_b32_dpp v{d}, v{c} wave_shl:1 {dppm}" for d, c, n in nb]
    ex += [f"s_mov_b64 exec, 1\nv_add_f32 v{Tt[0]}, v{Tt[0]}, v{VDS}\ns_mov_b32 exec_lo, 0\ns_mov_b32 exec_hi, -1\nv_mov_b32 v{Tt[7]}, v{T8}\ns_mov_b32 exec_lo, -1",
           f"v_cvt_pk_bf16_f32 v{T0}, v{P0}, 0", f"v_cvt_pk_bf16_f32 v{K0}, v{Tt[0]}, 0"]
    e = Tt + [T8]
    for cpy in range(2):
        ex += [f"v_cvt_pk_bf16_f32 v{EXT+4*cpy+i}, v{e[7-2*i+cpy]}, v{e[6-2*i+cpy]}" for i in range(4)]
        ex += [f"ds_write_b128 v{VKW}, v[{EXT+4*cpy}:{EXT+4*cpy+3}] offset:{64+CPB*cpy}"]
    ex += [f"v_cvt_pk_bf16_f32 v{W512}, 0, v{Q0}", f"v_cvt_pk_bf16_f32 v{W512+1}, v{Q0}, v{Q0}", f"v_cvt_pk_bf16_f32 v{D2W}, v{Q0n}, v{Q1}",
           f"v_cvt_pk_bf16_f32 v{D3W}, v{P0n}, v{P0}", f"v_cvt_pk_bf16_f32 v{D3W+1}, v{P1n}, v{P1}", f"v_readfirstlane_b32 s63, v{T0}",
           f"s_mov_b64 exec, 1\nds_write_b32 v{VKZ}, v{K0} offset:{CPB+1088}\nds_write_b64 v{VKZ}, v[{W512}:{W512+1}] offset:56\nds_write_b32 v{VKZ}, v{W512+1} offset:{CPB+60}\ns_mov_b64 exec, -1",
           f"ds_write_b32 v{VD2}, v{D2W} offset:{D2O+128}",
           f"s_mov_b32 exec_lo, 0xaaaaaaaa\ns_mov_b32 exec_hi, 0xaaaaaaaa\nds_write_b32 v{VD3}, v{D3W} offset:{D3O+128}\nds_write_b32 v{VD3}, v{D3W+1} offset:{D3O}\ns_mov_b64 exec, -1"]
    if not o.early3: ex += [f"s_mov_b64 exec, 1\nds_add_u32 v{VCN}, v{VONE} offset:12\ns_mov_b64 exec, -1"]
    def rdA(d, s_):
        v, o0 = (VA, 16*(16-s_)) if s_ >= 8 else (VA2, 16*(8-s_))
        return [f"ds_read2_b32 v[{d}:{d+1}], v{v} offset0:{o0} offset1:{o0+1}", f"ds_read2_b32 v[{d+2}:{d+3}], v{v} offset0:{o0+2} offset1:{o0+3}"]
    kv2 = lambda dn, f: KV + 8*(dn-2) + 4*f
    kv3 = lambda dn: KV + 24 + 4*(dn-4)
    kvr = []
    for f in range(2):
        for dn in (2, 3, 4):
            d = kv2(dn, f)
            kvr += [f"ds_read_b64 v[{d}:{d+1}], v{VK2} offset:{128*(4-dn) + 16*f}", f"ds_read_b64 v[{d+2}:{d+3}], v{VK2} offset:{128*(4-dn) + 16*f + 8}"]
    for dn in range(4, 8):
        d = kv3(dn); o0 = 16*(7-dn)
        kvr += [f"ds_read2_b32 v[{d}:{d+1}], v{VK3} offset0:{o0} offset1:{o0+1}", f"ds_read2_b32 v[{d+2}:{d+3}], v{VK3} offset0:{o0+2} offset1:{o0+3}"]
    q4 = lambda r: f"v[{r}:{r+3}]"
    def mm(d, x, y, zero=False): return f"v_mfma_f32_16x16x32_bf16 {q4(d)}, {q4(x)}, {q4(y)}, {'0' if zero else q4(d)}"
    acc = lambda n: AC + 4*n
    first = [mm(acc(n), A0, B0+4*n, True) for n in range(8)]
    d0 = [mm(acc(n), A0+4*c, B0+4*(n-c)) for c in (1, 2) for n in range(c, 8)] + [mm(acc(n), AFX, B0+4*(n-4)) for n in range(4, 8)]
    def gen(j):
        d = DP[j & 1]; f1 = F1 + 4*(j & 1); f0 = B0 + 4*j
        r = [mm(d, f1, BAND, True), mm(d+4, f0, BAND+4, True), mm(d+8, f0, BAND, True), mm(d+12, f0, BAND+8, True)]
        if j < 4: r += [mm(d+16, f1, BAND+12, True), mm(d+20, f0, BAND+16, True)]
        return r
    def cvt(j):
        d = DP[j & 1]; w = WF[j & 1]
        r = [f"v_cvt_pk_bf16_f32 v{w+2*rr+x}, v{d+8*x+rr}, v{d+8*x+4+rr}" for x in range(2) for rr in range(4)]
        if j < 4: r += [f"v_cvt_pk_bf16_f32 v{w+8+rr}, v{d+16+rr}, v{d+20+rr}" for rr in range(4)]
        return r
    def main(j):
        w = WF[j & 1]
        r = [mm(acc(j+dn), w+4*f, kv2(dn, f)) for f in range(2) for dn in (2, 3, 4) if j + dn <= 7]
        if j < 4: r += [mm(acc(j+dn), w+8, kv3(dn)) for dn in range(4, 8) if j + dn <= 7]
        return r
    def spread(mf, its):
        per = -(-len(its)//len(mf))
        for i, m in enumerate(mf):
            a(m)
            for t in its[i*per:(i+1)*per]: a(t)
    for m in gen(0): a(m)
    a(rdF(2))
    spread(gen(1), ex)
    for t in rdA(A0, 0) + [rdF(3)] + cvt(0): a(t)
    spread(gen(2), cvt(1))
    seq = []; fillers = []
    mark = {}
    def put(name, l):
        mark[name] = (len(seq), len(seq) + len(l) - 1); seq.extend(l)
    put("g3", gen(3)); put("first", first)
    for j in range(6):
        put(f"m{j}", main(j))
        if j in (1, 2): put(f"g{j+3}", gen(j+3))
        nfill = {3: 2, 4: 4}.get(j, 0)
        put(f"d{j}", d0[:nfill]); d0 = d0[nfill:]
    put("dl", d0)
    BS = [B0, DP[0]]; AS = [WF[0]+8, WF[0]]
    for rho in range(1, 8):
        put(f"r{rho}", [mm(acc(n), AS[rho & 1]+4*c, BS[rho & 1]+4*(n-c)) for c in (0, 1) for n in range(c, 8)])
    fillers += [(0, mark["m0"][0] - 5 + k//2, t, None) for k, t in enumerate(kvr)]
    fillers += [(0, mark["g4"][0] - 4, rdF(4), None), (mark["g3"][1], mark["g5"][0] - 4, rdF(5), None)]
    fillers += [(0, mark["d3"][0] - 4, t, None) for t in rdA(A0+4, 8) + rdA(A0+8, 16) + afx]
    for j in range(2, 6):
        lo = mark[f"m{j-2}"][1]
        if j >= 4: lo = max(lo, mark[f"g{j}"][1] + 2)
        hi = mark[f"g{j+2}"][0] - 1 if j < 4 else mark[f"m{j}"][0] - 2
        fillers += [(lo, hi, t, None) for t in cvt(j)]
    for rho in range(1, 8):
        hi = mark[f"r{rho}"][0] - 1
        for nu in range(8):
            if rho == 1: lo = mark["m4"][0] if nu < 6 else mark["m5"][0]
            elif rho == 2: lo = mark["dl"][1]
            else: lo = mark[f"r{rho-2}"][1]
            fillers.append((lo, hi + nu, rdB(BS[rho & 1]+4*nu, nu, rho), None))
            if nu in (0, 3):
                c = 0 if nu == 0 else 1
                la = mark["m4"][1] if rho == 1 else lo
                fillers += [(la, hi + 8*c, t, None) for t in rdA(AS[rho & 1]+4*c, 8*c + rho)]
    for i, m in enumerate(seq):
        a(m)
        ready = sorted([f for f in fillers if f[0] <= i], key=lambda f: f[1])
        for f in ready[:2]:
            assert f[1] >= i, (f, i)
            a(f[2]); fillers.remove(f)
    assert not fillers and len(seq) == 202 - 18
    a(f"""v_lshrrev_b32 v{T0}, 2, v{VQ}
    v_and_b32 v{T1}, 3, v0
    v_lshlrev_b32 v{T0}, 7, v{T0}
    v_and_b32 v{T2}, 1, v{VG}
    v_lshl_add_u32 v{T0}, v{T1}, 4, v{T0}
    v_lshl_add_u32 v{T0}, v{VHI}, 6, v{T0}
    s_lshl_b32 s60, s{CH}, 12
    s_add_u32 s60, s60, {hx(YT)}
    v_lshl_add_u32 v{T0}, v{T2}, 9, v{T0}""")
    for m in range(4):
        ob = 36 + 4*m
        for i in range(4): a(f"v_cvt_pk_bf16_f32 v{ob+i}, v{AC+8*m+2*i}, v{AC+8*m+2*i+1}")
        a(f"v_permlane16_swap_b32 v{ob}, v{ob+2}\nv_permlane16_swap_b32 v{ob+1}, v{ob+3}")
        a(f"buffer_store_dwordx4 v[{ob}:{ob+3}], v{T0}, s[12:15], s60 offen offset:{1024*m} sc1")
    stamp(a, o, 6)
    a(f"""v_lshlrev_b32 v{T2}, 7, v0
    s_mul_i32 s65, s{TB}, 205
    s_lshr_b32 s65, s65, 10
    s_mul_i32 s60, s65, 5
    s_sub_u32 s60, s{TB}, s60
    s_lshl_b32 s65, s65, 12
    s_lshl2_add_u32 s65, s60, s65
    s_add_u32 s65, s65, {hx(FL_YP)}
    h_noc:""")
    VOX, VBO, VIR, VIR2, VYR, VYD, VYT, VYW = 60, 61, 62, 63, 64, 65, 68, 69
    XV, BV, YV, BASE, PR = 72, 88, 92, 108, [140, 172]
    a(f"""v_min_u32 v{T0}, 39, v0
    s_lshl_b32 s61, s{RB}, 6
    v_mul_u32_u24 v{T1}, 6554, v{T0}
    s_lshl2_add_u32 s61, s{W}, s61
    v_lshrrev_b32 v{T1}, 16, v{T1}
    s_mul_i32 s61, s61, 1280
    v_mul_u32_u24 v70, 10, v{T1}
    s_mul_i32 s62, s{CB}, 160
    v_sub_u32 v{T0}, v{T0}, v70
    s_add_u32 s61, s61, s62
    v_lshlrev_b32 v{VBO}, 4, v{T0}
    v_mul_u32_u24 v70, 1280, v{T1}
    v_add3_u32 v{VOX}, v70, v{VBO}, s61
    s_mul_i32 s63, s{W}, {4*336}
    s_add_u32 s63, s63, {RING}
    s_mul_i32 s64, s{W}, {4*176}
    s_add_u32 s64, s64, {UB}
    v_mul_u32_u24 v70, 176, v{T1}
    v_add3_u32 v{VYR}, v70, v{VBO}, s64
    v_mul_u32_u24 v70, 336, v{T1}
    v_lshl_add_u32 v70, v{T0}, 5, v70
    v_add_u32 v{VIR}, s63, v70
    v_add_u32 v{VIR2}, {2*REG}, v{VIR}""")
    for t in range(4): a(f"s_mov_b32 s{32+t}, {t*16*1280}")
    a("s_waitcnt vmcnt(0)")
    lds_arrive(a, 1, VCN, VONE, rtn=T1)
    if o.wait:
        SK = a.lab("ys")
        a(f"""s_cbranch_scc0 {SK}
        s_cmp_ge_u32 s2, 160
        s_cbranch_scc1 {SK}
        s_mov_b32 exec_hi, 0
        buffer_store_dword v{VONE}, v{T2}, s[12:15], s65 offen sc1
        s_mov_b64 exec, -1
        {SK}:""")
        lds_wait4(a, o, 0, VCN, T1)
    lds_wait4(a, o, 1, VCN, T1)
    a(f"s_setprio {o.prio_fin}")
    a("s_mov_b32 exec_hi, 0xff")
    for t in range(4): a(f"buffer_load_dwordx4 v[{XV+4*t}:{XV+4*t+3}], v{VOX}, s[4:7], s{32+t} offen")
    a(f"buffer_load_dwordx4 v[{BV}:{BV+3}], v{VBO}, s[24:27], s62 offen\ns_mov_b32 exec_hi, -1")
    a(f"""v_lshrrev_b32 v{T0}, 3, v0
    v_mul_u32_u24 v{T0}, {4096-128}, v{T0}
    v_add_u32 v{VYD}, v{T0}, v{VL16}
    v_add_u32 v{VYD+1}, 0x8000, v{VYD}
    v_add_u32 v{VYD+2}, 0x10000, v{VYD}
    v_lshrrev_b32 v{T0}, 2, v{VQ}
    v_and_b32 v{T1}, 2, v0
    v_lshlrev_b32 v{T0}, 7, v{T0}
    v_and_b32 v{T2}, 1, v0
    v_lshl_add_u32 v{T0}, v{T1}, 5, v{T0}
    v_lshl_add_u32 v{T0}, v{VG}, 4, v{T0}
    v_lshl_add_u32 v{T0}, v{T2}, 3, v{T0}
    v_add_u32 v{VYT}, s{KEB}, v{T0}
    s_mul_i32 s60, s{W}, 40
    s_add_u32 s60, s60, {UB}
    v_mul_u32_u24 v{T0}, 176, v0
    v_add_u32 v{VYW}, s60, v{T0}
    s_mul_i32 s60, s{CB}, 80
    s_mul_i32 s61, s{W}, 20
    s_add_u32 s60, s60, s61
    s_lshl_b32 s60, s60, 12
    s_lshl_b32 s61, s{RB}, 7
    s_add_u32 s60, s60, s61
    s_add_u32 s65, s60, {hx(YT)}
    s_lshl2_add_u32 s66, s{CB}, s{W}
    s_lshl_b32 s66, s66, 5
    s_add_u32 s66, s66, s{RB}
    s_lshl_b32 s66, s66, 7
    s_add_u32 s66, s66, {hx(FL_YP)}""")
    def base():
        BF = PR[0]
        for i in range(4): a(f"v_lshlrev_b32 v{BF+2*i}, 16, v{BV+i}\nv_and_b32 v{BF+2*i+1}, 0xffff0000, v{BV+i}")
        for i in range(16): a(f"v_lshlrev_b32 v{BASE+2*i}, 16, v{XV+i}\nv_and_b32 v{BASE+2*i+1}, 0xffff0000, v{XV+i}")
        for i in range(32): a(f"v_add_f32 v{BASE+i}, v{BASE+i}, v{BF+(i & 7)}")
    if o.base0: base()
    spoll(a, o, "s_load_dwordx8 s[40:47], s[12:13], s66 glc", "s_and_b64 s[40:41], s[40:41], s[42:43]\ns_and_b32 s40, s40, s41\ns_and_b32 s40, s40, s44\ns_cmp_eq_u32 s40, 1", "YF", o.ysleep)
    stamp(a, o, 7)
    for q in range(3):
        if q == 2: a("s_mov_b32 exec_hi, 0")
        a(f"s_add_u32 m0, s{KEB}, {1024*q}\nbuffer_load_dwordx4 v{VYD+q}, s[12:15], s65 offen sc1 lds")
    a("s_mov_b32 exec_hi, -1")
    if not o.base0: base()
    def addy(t):
        for i in range(4*t, 4*t+4):
            a(f"""v_lshlrev_b32 v{XV+12}, 16, v{YV+i}
            v_and_b32 v{XV+13}, 0xffff0000, v{YV+i}
            v_add_f32 v{BASE+2*i}, v{BASE+2*i}, v{XV+12}
            v_add_f32 v{BASE+2*i+1}, v{BASE+2*i+1}, v{XV+13}""")
    def rdp(t, pr):
        for w_ in range(4):
            for h in range(2):
                r = pr + 8*w_ + 4*h
                a(f"ds_read_b128 v[{r}:{r+3}], v{VIR if w_ < 2 else VIR2} offset:{(w_ & 1)*REG + t*16*336 + 16*h}")
    def fin(t, pr, pk):
        b = BASE + 8*t
        for w_ in range(4):
            if pk:
                for e in range(4): a(f"v_pk_add_f32 v[{b+2*e}:{b+2*e+1}], v[{b+2*e}:{b+2*e+1}], v[{pr+8*w_+2*e}:{pr+8*w_+2*e+1}]")
            else:
                for e in range(8): a(f"v_add_f32 v{b+e}, v{b+e}, v{pr+8*w_+e}")
    def out(t):
        b = BASE + 8*t; ob = XV + 4*(t % 3)
        for e in range(4): a(f"v_cvt_pk_bf16_f32 v{ob+e}, v{b+2*e}, v{b+2*e+1}")
        a(f"s_mov_b32 exec_hi, 0xff\nbuffer_store_dwordx4 v[{ob}:{ob+3}], v{VOX}, s[16:19], s{32+t} offen {o.out_flags}\ns_mov_b32 exec_hi, -1")
    def y_move():
        a("s_waitcnt vmcnt(0)")
        for m in range(5): a(f"ds_read_b64_tr_b16 v[{XV+2*m}:{XV+2*m+1}], v{VYT} offset:{512*m}")
        for m in range(5): a(f"ds_write_b64 v{VYW}, v[{XV+2*m}:{XV+2*m+1}] offset:{8*m}")
        lds_arrive(a, 2, VCN, VONE)
    def y_get():
        lds_wait4(a, o, 2, VCN, T1)
        for t in range(4): a(f"ds_read_b128 v[{YV+4*t}:{YV+4*t+3}], v{VYR} offset:{t*16*176}")
        stamp(a, o, 8)
    def tile(t):
        lds_wait4(a, o, 4 + t, VCN, T1)
        if t == 3: stamp(a, o, 9)
        rdp(t, PR[t & 1])
    if o.fin == 3:
        y_move(); y_get()
        for t in range(4): addy(t)
        for t in range(4):
            tile(t); fin(t, PR[t & 1], t == 3); out(t)
    elif o.fin == 0:
        y_move(); y_get(); addy(0)
        for t in range(4):
            tile(t)
            if t < 3: addy(t + 1)
            fin(t, PR[t & 1], t == 3); out(t)
    else:
        if o.fin == 2: tile(0); fin(0, PR[0], False); y_move()
        else: y_move(); tile(0); fin(0, PR[0], False)
        y_get(); tile(1)
        addy(0); out(0); addy(1); fin(1, PR[1], False); out(1)
        tile(2); addy(2); addy(3); fin(2, PR[0], False); out(2)
        tile(3); fin(3, PR[1], True); out(3)
    if o.prof:
        a("s_waitcnt vmcnt(0)")
        stamp(a, o, 10)
        stamp_flush(a, o, 11, 4, T1)
    a("s_endpgm")

HEADER = open("cdna_kernels/" + NAME + ".s.ref").read().split("; Override launch")[0]

def build(o):
    a = Asm()
    k = NAME + "_kernel"
    a(f"{k}:")
    entry(a, o)
    role_h(a, o)
    role_a(a, o)
    role_c(a, o)
    a("k_end:\ns_endpgm")
    body = a.finish([k], verbose=True)
    return f"""{HEADER}; @launch grid=(256,1,1) block=(512,1,1) lds={LDS_BYTES}
.amdgcn_target "amdgcn-amd-amdhsa--gfx950"
.text
.globl {k}
.p2align 8
.type {k},@function
{body}
.section .rodata,"a"
.p2align 6
.amdhsa_kernel {k}
  .amdhsa_next_free_vgpr 256
  .amdhsa_next_free_sgpr 102
  .amdhsa_accum_offset 256
  .amdhsa_group_segment_fixed_size 0
  .amdhsa_kernarg_size 136
  .amdhsa_user_sgpr_count 2
  .amdhsa_user_sgpr_kernarg_segment_ptr 1
  .amdhsa_system_sgpr_workgroup_id_x 1
.end_amdhsa_kernel
"""

if __name__ == "__main__":
    o = Opt()
    out = sys.argv[1]
    for kv in sys.argv[2:]:
        k, v = kv.split("=")
        cur = getattr(o, k)
        setattr(o, k, v.replace("_", " ") if isinstance(cur, str) else (bool(int(v)) if isinstance(cur, bool) else int(v)))
    open(out, "w").write(build(o))
```
